```python
import torch

def _softmax(x, axis=-1):
    return torch.softmax(x, dim=axis)
def _gelu(x):
    return torch.nn.functional.gelu(x, approximate="tanh")
def _silu(x):
    return torch.nn.functional.silu(x)
def _sigmoid(x):
    return torch.sigmoid(x)
def _layernorm(x, axis=-1, eps=1e-5):
    m = x.mean(dim=axis, keepdim=True)
    v = x.var(dim=axis, keepdim=True, unbiased=False)
    return (x - m) / torch.sqrt(v + eps)
def _scatter_add(tgt, idx, src, axis=0):
    return tgt.clone().index_add_(axis, idx, src)
def _segment_sum(src, seg, n):
    out = torch.zeros((n,) + src.shape[1:], dtype=src.dtype)
    return out.index_add_(0, seg, src)
def _pad(x, pw):
    flat = tuple(v for pair in reversed(pw) for v in pair)
    return torch.nn.functional.pad(x, flat)

kernel_name = 'standalone__gqa_softmax__near_ridge'

def setup_inputs():

    _w = (lambda a: (lambda t: t.to(torch.bfloat16) if t.is_floating_point() else t)(torch.as_tensor(a)))
    B, Hq, Hkv, Sq, Sk, D = 32, 32, 16, 384, 512, 128
    return {
        "q": _w((lambda *s: torch.randn(*s, dtype=torch.bfloat16) * 0.8)(B, Hq, Sq, D)),
        "k": _w((lambda *s: torch.randn(*s, dtype=torch.bfloat16) * 0.8)(B, Hkv, Sk, D)),
        "v": _w((lambda *s: torch.randn(*s, dtype=torch.bfloat16) * 0.05)(B, Hkv, Sk, D)),
    }

def reference(q, k, v):
    B, Hq, Sq, D = q.shape
    Hkv = k.shape[1]
    rep = Hq // Hkv
    k = (lambda x, n, axis: torch.repeat_interleave(x, n, dim=axis))(k, rep, axis=1)
    v = (lambda x, n, axis: torch.repeat_interleave(x, n, dim=axis))(v, rep, axis=1)
    scale = D ** -0.5
    scores = torch.einsum("bhqd,bhkd->bhqk", q, k) * scale
    p = _softmax(scores, axis=-1)
    return torch.einsum("bhqk,bhkd->bhqd", p, v)
```

```python
KN = "standalone__gqa_softmax__near_ridge_kernel"
def header(grid, block, lds):
    return f"""; @launch grid=({grid},1,1) block=({block},1,1) lds={lds}
.amdgcn_target "amdgcn-amd-amdhsa--gfx950"
.text
.globl {KN}
.p2align 8
.type {KN},@function
{KN}:
"""
def footer(nv=512, acc=256, ns=102):
    return f"""s_endpgm
.section .rodata,"a"
.p2align 6
.amdhsa_kernel {KN}
  .amdhsa_next_free_vgpr {nv}
  .amdhsa_next_free_sgpr {ns}
  .amdhsa_accum_offset {acc}
  .amdhsa_group_segment_fixed_size 0
  .amdhsa_kernarg_size 48
  .amdhsa_user_sgpr_count 2
  .amdhsa_user_sgpr_kernarg_segment_ptr 1
  .amdhsa_system_sgpr_workgroup_id_x 1
.end_amdhsa_kernel
"""
```

```python
import re
TRANS = ("v_exp_f32", "v_rcp_f32", "v_log_f32", "v_rsq_f32", "v_sqrt_f32")
def regs(tok):
    tok = tok.strip().lstrip("-")
    m = re.fullmatch(r"([vas])(\d+)", tok)
    if m: return {(m.group(1), int(m.group(2)))}
    m = re.fullmatch(r"([vas])\[(\d+):(\d+)\]", tok)
    if m: return {(m.group(1), i) for i in range(int(m.group(2)), int(m.group(3)) + 1)}
    if tok == "vcc": return {("s", 106), ("s", 107)}
    if tok == "m0": return {("s", 124)}
    return set()
class I:
    def __init__(s, text):
        s.text = text
        t = text.split(";")[0].strip()
        s.op = t.split()[0] if t else ""
        s.real = bool(t) and not t.endswith(":") and not t.startswith(".")
        rest = t[len(s.op):]
        ops = [x.strip() for x in rest.split(",")]
        ops = [o.split()[0] if o else "" for o in ops]
        s.w = set(); s.r = set(); s.kind = "o"; s.C = set(); s.AB = set(); s.data = set()
        op = s.op
        if op.startswith("v_mfma"):
            s.kind = "mfma"; s.w = regs(ops[0]); s.AB = regs(ops[1]) | regs(ops[2]); s.C = regs(ops[3]); s.r = s.AB | s.C
            s.passes = 4 if "16x16x32" in op else 8
        elif op.startswith("v_"):
            s.kind = "valu"; s.w = regs(ops[0])
            for o in ops[1:]: s.r |= regs(o)
            if "permlane" in op: s.w |= regs(ops[1]); s.r |= regs(ops[0])
            if op.startswith("v_fmac") or op.startswith("v_dot2c"): s.r |= regs(ops[0])
            if op.startswith("v_cndmask") and len(ops) == 3: s.r |= regs("vcc")
        elif op.startswith("ds_read"):
            s.kind = "ds"; s.w = regs(ops[0]); s.r = regs(ops[1])
        elif op.startswith("ds_write"):
            s.kind = "ds"; s.r = regs(ops[0]) | regs(ops[1])
        elif op.startswith("buffer_load"):
            s.kind = "vmem"; s.lds = t.endswith("lds")
            if s.lds:
                for o in ops: s.r |= regs(o)
                s.r |= regs("m0")
            else:
                s.w = regs(ops[0])
                for o in ops[1:]: s.r |= regs(o)
        elif op.startswith("global_load"):
            s.kind = "vmem"; s.w = regs(ops[0])
            for o in ops[1:]: s.r |= regs(o)
        elif op.startswith("buffer_store") or op.startswith("global_store"):
            s.kind = "vmem"
            for o in ops: s.r |= regs(o)
            if "x4" in op or "x3" in op: s.data = regs(ops[0] if op.startswith("buffer") else ops[1])
        elif op.startswith("s_"):
            s.kind = "salu"
            if not op.startswith(("s_cmp", "s_waitcnt", "s_nop", "s_barrier", "s_cbranch", "s_branch", "s_setprio", "s_endpgm")): s.w = regs(ops[0])
        s.states = 1
        if op == "s_nop": s.states = int(ops[0], 0) + 1
def need(p, c):
    n = 0
    vw = {x for x in p.w if x[0] != "s"}; sw = {x for x in p.w if x[0] == "s"}
    if p.kind == "valu":
        if c.kind == "mfma" and vw & c.r: n = max(n, 2)
        if p.op.startswith(TRANS) and c.kind == "valu" and not c.op.startswith(TRANS) and vw & c.r: n = max(n, 1)
        if "permlane" in c.op and vw & c.r: n = max(n, 2)
        if c.op.startswith(("v_readfirstlane", "v_readlane")) and vw & c.r: n = max(n, 1)
        if c.kind == "vmem" and sw & c.r: n = max(n, 5)
        if c.kind == "valu" and sw & c.r: n = max(n, 2)
    if p.kind == "mfma":
        big = {4: 8, 8: 12}[p.passes]
        if c.kind in ("valu", "ds", "vmem") and vw & (c.r | c.w): n = max(n, big)
        if c.kind == "mfma":
            if vw & c.AB: n = max(n, big)
            if vw & c.C and not (c.C == vw and c.passes == p.passes): n = max(n, big - 2)
            if vw & c.w and not (vw & c.C): n = max(n, big)
        if c.kind == "valu" and p.C & c.w: n = max(n, {4: 3, 8: 7}[p.passes])
    if p.data and (p.data & c.w): n = max(n, 2)
    if p.kind == "salu" and ("s", 124) in p.w and c.kind == "vmem" and ("s", 124) in c.r: n = max(n, 1)
    return n
def fix(lines, verbose=False):
    out = []; hist = []
    added = 0
    for t in lines:
        c = I(t)
        if c.real:
            d = 0; short = 0
            for p in reversed(hist[-14:]):
                k = need(p, c) - d
                if k > short: short = k; why = p.text
                d += p.states
            if short > 0:
                if verbose: print("haz: +%d before [%s] after [%s]" % (short, t, why))
                nop = I(f"s_nop {short-1}"); out.append(nop.text); hist.append(nop); added += 1
            hist.append(c)
        out.append(t)
    return out
```

```python
import sys, struct, math
from gcom import footer
import haz

OPT = dict(bar2=1, stamps=0, nt_kv=0, nt_q=0, nt_o=0, noslow=0)
out_path = sys.argv[1]
for a in sys.argv[2:]:
    k, v = a.split("="); OPT[k] = int(v)

KN = "standalone__gqa_softmax__near_ridge_kernel"
NQB = 6; NU = 16; NSLOT = 8
REG = 2112; SLOT = 4 * REG; VRING = NSLOT * SLOT; LDS = 2 * VRING
LA = NSLOT - 1 if OPT["bar2"] else NSLOT
C = math.log2(math.e) / math.sqrt(128.0)
CBITS = struct.unpack("<I", struct.pack("<f", C))[0]
LO_BITS = (127 - 20) << 23; HI_BITS = (127 + 30) << 23

KADDR, VADDR, VOFFK, VOFFV, VOFFQ = 1, 2, 3, 4, 5
LREG = 6
TMP = 12
SREG = 16
PREG = 32
ET = 40
QCUR = 64; QNXT = 160
AO = 0; AK = 192; AV = 224
sQ, sK, sV, sO = 4, 8, 12, 16
sW, sMK, sMV, sT, sQOFF, sQNX, sKV, sKVNX, sTMP, sFLAG, sC, sMASK, sRNG = 20, 21, 22, 23, 24, 25, 26, 27, 28, 29, 30, 32, 33
sU = 34; sQ0 = 35; sKV0 = 36; sT2 = 37; sBIT = 38

def vr(b, n=1): return f"v{b}" if n == 1 else f"v[{b}:{b+n-1}]"
def ar(b, n=1): return f"a{b}" if n == 1 else f"a[{b}:{b+n-1}]"
def srd(b): return f"s[{b}:{b+3}]"
def Q(qb, ks): return vr(QCUR + 16 * qb + 4 * ks, 4)
def Kf(kb, ks): return ar(AK + 16 * kb + 4 * ks, 4)
def Vf(db): return ar(AV + 4 * db, 4)
def O(qb, db): return ar(AO + 32 * qb + 4 * db, 4)
def S(buf, i, n=1): return vr(SREG + 8 * buf + i, n)
def P(buf, i=0, n=4): return vr(PREG + 4 * buf + i, n)
NTKV = " nt" if OPT["nt_kv"] else ""
NTQ = " nt" if OPT["nt_q"] else ""
NTO = " nt" if OPT["nt_o"] else ""

class VM:
    def __init__(s, text, tag): s.text, s.tag = text, tag
class WVM:
    def __init__(s, cond, extra=""): s.cond, s.extra, s.n = cond, extra, 63

def mfma(d, a, b, c): return f"v_mfma_f32_16x16x32_bf16 {d}, {a}, {b}, {c}"
def qk_mfmas(m):
    qb, buf = m % NQB, m % 2
    return [mfma(S(buf, 4 * kb, 4), Kf(kb, ks), Q(qb, ks), "0" if ks == 0 else S(buf, 4 * kb, 4)) for kb in range(2) for ks in range(4)]
def pv_mfmas(n):
    u, qb = divmod(n, NQB)
    return [mfma(O(qb, db), Vf(db), P(n % 2), "0" if u == 0 else O(qb, db)) for db in range(8)]
def kread(slot, kb, ks): return f"ds_read_b128 {Kf(kb, ks)}, {vr(KADDR)} offset:{slot*SLOT + kb*1024 + ks*64}"
def vread(slot, db, hf): return f"ds_read_b64_tr_b16 {ar(AV + 4*db + 2*hf, 2)}, {vr(VADDR)} offset:{slot*SLOT + hf*1024 + (db>>1)*64 + (db&1)*8}"
def dma(kv, j, rel):
    if kv == "k": return VM(f"buffer_load_dwordx4 {vr(VOFFK)}, {srd(sK)}, s{sKV} offen offset:{j*1024}{NTKV} lds", ("kv", rel))
    return VM(f"buffer_load_dwordx4 {vr(VOFFV)}, {srd(sV)}, s{sKV} offen offset:{j*1024}{NTKV} lds", ("kv", rel))
def setm0(kv, slot): return f"s_add_u32 m0, s{sMK if kv == 'k' else sMV}, {slot*SLOT}"
def qload(base, qb, ks, tag): return VM(f"buffer_load_dwordx4 {vr(base + 16*qb + 4*ks, 4)}, {vr(VOFFQ)}, {srd(sQ)}, s{sTMP} offen offset:{ks*64}{NTQ}", tag)

def step(n):
    N = NU * NQB
    do_qk, do_sm, do_pv = n + 2 < N, 0 <= n + 1 < N, n >= 0
    qk = qk_mfmas(n + 2) if do_qk else [None] * 8
    pv = pv_mfmas(n) if do_pv else [None] * 8
    before = [[] for _ in range(16)]
    mem = [[] for _ in range(16)]
    val = [[] for _ in range(16)]
    if do_sm:
        m = n + 1; buf = m % 2; u, qb = divmod(m, NQB); l = vr(LREG + qb)
        for i in range(8):
            val[2 * i].append(f"v_exp_f32 {S(buf, i)}, {S(buf, i)}")
            val[2 * i + 1].append(f"v_mov_b32 {l}, {S(buf, i)}" if (u == 0 and i == 0) else f"v_add_f32 {l}, {l}, {S(buf, i)}")
            if i % 2: val[2 * i + 1].append(f"v_cvt_pk_bf16_f32 {P(buf, i // 2, 1)}, {S(buf, i - 1)}, {S(buf, i)}")
    u, ph = divmod(n, NQB)
    if ph == 3 and n >= 0:
        for j in range(8): mem[2 * j].append(kread((u + 1) % NSLOT, j // 4, j % 4))
    if ph == 4 and do_qk:
        before[0].append("s_waitcnt lgkmcnt(4)"); before[8].append("s_waitcnt lgkmcnt(0)")
    if ph == 5 and n >= 0:
        for db in range(8):
            mem[2 * db + 1].append(vread((u + 1) % NSLOT, db, 0)); mem[2 * db + 1].append(vread((u + 1) % NSLOT, db, 1))
    if ph == 0:
        before[1].append("s_waitcnt lgkmcnt(8)"); before[9].append("s_waitcnt lgkmcnt(0)")
    if n >= 0:
        rel = u + LA
        if ph == 2:
            if not OPT["bar2"]: before[0] += [WVM(("kv", u + 1)), "s_barrier"]
            elif u % 2 == 0: before[0] += [WVM(("kv", u + 2)), "s_barrier"]
            if rel == NU:
                val[1] += [f"s_mov_b32 s{sKV}, s{sKVNX}", f"s_cmp_lt_u32 s{sT}, 3", f"s_cselect_b32 s{sK+2}, s{sK+2}, 0", f"s_cselect_b32 s{sV+2}, s{sV+2}, 0"]
            val[1].append(setm0("k", rel % NSLOT))
            mem[5].append(dma("k", 0, rel)); mem[9].append(dma("k", 1, rel))
        if ph == 4:
            val[1].append(setm0("v", rel % NSLOT))
            mem[5].append(dma("v", 0, rel)); mem[9].append(dma("v", 1, rel))
            val[13].append(f"s_add_u32 s{sKV}, s{sKV}, 8192")
        if ph == 1 and 1 <= u <= 12:
            qb, h = divmod(u - 1, 2)
            if h == 0: val[1].append(f"s_add_u32 s{sTMP}, s{sQNX}, {qb*4096}")
            mem[5].append(qload(QNXT, qb, 2 * h, ("q", 1, qb))); mem[9].append(qload(QNXT, qb, 2 * h + 1, ("q", 1, qb)))
    if n == N - 1:
        red = lreduce("add")
        per = (len(red) + 7) // 8
        for i in range(8): val[2 * i + 1] += red[i * per:(i + 1) * per]
    o = [f"; step {n}"]
    for i in range(16):
        m = qk[i // 2] if i % 2 == 0 else pv[i // 2]
        o += before[i]
        if m: o.append(m)
        o += mem[i] + val[i]
        if not m and i % 2 == 1 and val[i] and val[i - 1] and not before[i] : pass
    return o

def lreduce(op):
    o = []
    ins = "v_add_f32" if op == "add" else "v_max_f32"
    for sw in ("v_permlane32_swap_b32", "v_permlane16_swap_b32"):
        for q in range(NQB): o.append(f"v_mov_b32 {vr(ET + q)}, {vr(LREG + q)}")
        for q in range(NQB): o.append(f"{sw} {vr(LREG + q)}, {vr(ET + q)}")
        for q in range(NQB): o.append(f"{ins} {vr(LREG + q)}, {vr(LREG + q)}, {vr(ET + q)}")
    return o

def epilogue(check):
    o = ["; epilogue"]
    if check:
        o.append(f"v_subrev_u32 {vr(TMP)}, s{sRNG}, {vr(LREG)}")
        for q in range(1, NQB):
            o.append(f"v_subrev_u32 {vr(TMP+1)}, s{sRNG}, {vr(LREG+q)}")
            o.append(f"v_max_u32 {vr(TMP)}, {vr(TMP)}, {vr(TMP+1)}")
        o.append(f"v_cmp_lt_u32 vcc, {hex(HI_BITS - LO_BITS)}, {vr(TMP)}")
    for q in range(NQB): o.append(f"v_rcp_f32 {vr(LREG+q)}, {vr(LREG+q)}")
    if check:
        o += [f"s_cmp_lg_u64 vcc, 0", f"s_cselect_b32 s{sT2}, s{sBIT}, 0", f"s_or_b32 s{sFLAG}, s{sFLAG}, s{sT2}"]
    k = 0
    for qb in range(NQB):
        o.append(f"s_add_u32 s{sTMP}, s{sQOFF}, {qb*4096}")
        lp = LREG + (qb & ~1); sel = "op_sel:[0,1] op_sel_hi:[1,1]" if qb & 1 else "op_sel_hi:[1,0]"
        for e in range(4):
            T = ET + 8 * (k % 2); Dd = ET + 16 + 4 * (k % 2); k += 1
            for i in range(8): o.append(f"v_accvgpr_read_b32 {vr(T+i)}, {ar(AO + 32*qb + 8*e + i)}")
            for i in range(4): o.append(f"v_pk_mul_f32 {vr(T+2*i, 2)}, {vr(T+2*i, 2)}, {vr(lp, 2)} {sel}")
            for i in range(4): o.append(f"v_cvt_pk_bf16_f32 {vr(Dd+i)}, {vr(T+2*i)}, {vr(T+2*i+1)}")
            o.append(VM(f"buffer_store_dwordx4 {vr(Dd, 4)}, {vr(VOFFQ)}, {srd(sO)}, s{sTMP} offen offset:{e*64}{NTO}", ("o",)))
    return o

def qscale():
    o = ["; scale Q by log2(e)/sqrt(D)"]
    for qb in range(NQB):
        o.append(WVM(("q", 0, qb)))
        for g in range(4):
            b = 16 * qb + 4 * g; T = ET + 8 * (g % 2)
            for i in range(4):
                o.append(f"v_lshlrev_b32 {vr(T+2*i)}, 16, {vr(QNXT+b+i)}")
                o.append(f"v_and_b32 {vr(T+2*i+1)}, s{sMASK}, {vr(QNXT+b+i)}")
            for i in range(4): o.append(f"v_pk_mul_f32 {vr(T+2*i, 2)}, {vr(T+2*i, 2)}, s[{sC}:{sC+1}]")
            for i in range(4): o.append(f"v_cvt_pk_bf16_f32 {vr(QCUR+b+i)}, {vr(T+2*i)}, {vr(T+2*i+1)}")
    return o

def stamp(i):
    if not OPT["stamps"]: return []
    return [f"s_memtime s[{60+4*i}:{61+4*i}]", f"s_memrealtime s[{62+4*i}:{63+4*i}]"]

pro = []
A = pro.append
A("s_cmp_ge_u32 s2, 256"); A("s_cbranch_scc1 Lend")
A("s_load_dwordx4 s[40:43], s[0:1], 0"); A("s_load_dwordx4 s[44:47], s[0:1], 16")
if OPT["stamps"]:
    A("s_load_dwordx2 s[48:49], s[0:1], 40")
pro += stamp(0)
A("v_lshrrev_b32 v12, 6, v0"); A("v_and_b32 v0, 63, v0")
A(f"v_readfirstlane_b32 s{sW}, v12")
A("v_and_b32 v13, 15, v0"); A("v_lshrrev_b32 v14, 4, v0")
A("v_lshrrev_b32 v15, 2, v13"); A(f"v_mul_u32_u24 v{KADDR}, {REG}, v15")
A(f"v_add_u32 v{VADDR}, {VRING}, v{KADDR}")
A("v_and_b32 v15, 3, v13")
A(f"v_lshl_add_u32 v{KADDR}, v15, 8, v{KADDR}")
A("v_xor_b32 v16, v14, v15"); A(f"v_lshl_add_u32 v{KADDR}, v16, 4, v{KADDR}")
A(f"v_lshl_add_u32 v{VADDR}, v14, 8, v{VADDR}"); A(f"v_lshl_add_u32 v{VADDR}, v15, 4, v{VADDR}")
A("v_xor_b32 v16, v13, v14"); A("v_lshlrev_b32 v16, 4, v16"); A(f"v_lshl_add_u32 v{VOFFK}, v14, 8, v16")
A(f"v_lshl_add_u32 v{VOFFK}, v12, 11, v{VOFFK}")
A("v_lshlrev_b32 v16, 4, v13"); A(f"v_lshl_add_u32 v{VOFFV}, v14, 11, v16"); A(f"v_lshl_add_u32 v{VOFFV}, v12, 8, v{VOFFV}")
A(f"v_mul_u32_u24 v16, {16*NQB}, v12"); A("v_add_u32 v16, v16, v13"); A("v_lshlrev_b32 v16, 8, v16"); A(f"v_lshl_add_u32 v{VOFFQ}, v14, 4, v16")
A(f"s_lshr_b32 s{sT2}, s2, 4"); A(f"s_lshl_b32 s{sT2}, s{sT2}, 3"); A(f"s_and_b32 s{sTMP}, s2, 7"); A(f"s_add_u32 s{sT2}, s{sT2}, s{sTMP}")
A(f"s_lshl_b32 s{sKV0}, s{sT2}, 17")
A(f"s_lshl_b32 s{sT2}, s{sT2}, 1"); A(f"s_lshr_b32 s{sTMP}, s2, 3"); A(f"s_and_b32 s{sTMP}, s{sTMP}, 1"); A(f"s_add_u32 s{sT2}, s{sT2}, s{sTMP}")
A(f"s_mul_i32 s{sQ0}, s{sT2}, 98304")
A(f"s_mul_i32 s{sMK}, s{sW}, {REG}"); A(f"s_add_u32 s{sMV}, s{sMK}, {VRING}")
A(f"s_mov_b32 s{sT}, 0"); A(f"s_mov_b32 s{sFLAG}, 0"); A(f"s_mov_b32 s{sBIT}, 1")
A(f"s_mov_b32 s{sC}, {hex(CBITS)}"); A(f"s_mov_b32 s{sC+1}, {hex(CBITS)}"); A(f"s_mov_b32 s{sMASK}, 0xffff0000"); A(f"s_mov_b32 s{sRNG}, {hex(LO_BITS)}")
A(f"s_mov_b32 s{sKV}, s{sKV0}"); A(f"s_mov_b32 s{sQNX}, s{sQ0}"); A(f"s_mov_b32 s{sKVNX}, s{sKV0}")
A("s_waitcnt lgkmcnt(0)")
def build_srds():
    o = []
    for r, p, n in ((sQ, 40, 100663296), (sK, 42, 67108864), (sV, 44, 67108864), (sO, 46, 100663296)):
        o += [f"s_mov_b32 s{r}, s{p}", f"s_mov_b32 s{r+1}, s{p+1}", f"s_mov_b32 s{r+2}, {n}", f"s_mov_b32 s{r+3}, 0x20000"]
    return o
pro += build_srds()
def dma_unit(rel):
    return [setm0("k", rel % NSLOT), "s_nop 0", dma("k", 0, rel), dma("k", 1, rel), setm0("v", rel % NSLOT), "s_nop 0", dma("v", 0, rel), dma("v", 1, rel), f"s_add_u32 s{sKV}, s{sKV}, 8192"]
pro += dma_unit(0)
for qb in range(NQB):
    A(f"s_add_u32 s{sTMP}, s{sQNX}, {qb*4096}")
    for ks in range(4): A(qload(QNXT, qb, ks, ("q", 0, qb)))
for r in range(1, LA): pro += dma_unit(r)
A(WVM(("kv", 0))); A("s_barrier")
for db in range(8): A(vread(0, db, 0)); A(vread(0, db, 1))
A("s_waitcnt lgkmcnt(0)")
for j in range(8): A(kread(0, j // 4, j % 4))

body = [".p2align 6", "Litem:"]
body += [f"s_mov_b32 s{sQOFF}, s{sQNX}", f"s_add_u32 s{sQNX}, s{sQNX}, {256*98304}", f"s_add_u32 s{sKVNX}, s{sKVNX}, {128*131072}",
         f"s_cmp_lt_u32 s{sT}, 3", f"s_cselect_b32 s{sQ+2}, s{sQ+2}, 0"]
body += qscale()
for n in range(-2, NU * NQB):
    body += step(n)
body += epilogue(True)
body += [f"s_lshl_b32 s{sBIT}, s{sBIT}, 1", f"s_add_u32 s{sT}, s{sT}, 1", f"s_cmp_lt_u32 s{sT}, 4", "s_cbranch_scc1 Litem"]

def resolve():
    hist = []
    def absk(tag, it):
        if tag[0] == "kv": return ("kv", tag[1] + 16 * it)
        if tag[0] == "q": return ("q", tag[1] + it, tag[2])
        return tag
    def run(seq, it):
        for x in seq:
            if isinstance(x, VM): hist.append(absk(x.tag, it))
            elif isinstance(x, WVM):
                c = absk(x.cond, it)
                last = -1
                for i, t in enumerate(hist):
                    if t[0] == c[0] and ((c[0] == "kv" and t[1] <= c[1]) or (c[0] == "q" and t == c)): last = i
                assert last >= 0, c
                x.n = min(x.n, len(hist) - 1 - last)
    run(pro, 0); run(body, 0); run(body, 1); run(body, 2)
resolve()

slow = []
A = slow.append
A(f"s_cmp_eq_u32 s{sFLAG}, 0"); A("s_cbranch_scc1 Lfin")
A("s_waitcnt vmcnt(0) lgkmcnt(0)"); A("s_barrier")
slow += build_srds()
A(f"s_mul_i32 s{sMK}, s{sW}, {2*SLOT}"); A(f"s_add_u32 s{sMV}, s{sMK}, {VRING}")
A(f"v_add_u32 v{KADDR}, s{sMK}, v{KADDR}"); A(f"v_add_u32 v{VADDR}, s{sMK}, v{VADDR}")
A(f"s_lshl_b32 s{sT2}, s{sW}, 11"); A(f"v_subrev_u32 v{VOFFK}, s{sT2}, v{VOFFK}")
A(f"s_lshl_b32 s{sT2}, s{sW}, 8"); A(f"v_subrev_u32 v{VOFFV}, s{sT2}, v{VOFFV}")
A(f"s_mov_b32 s{sQOFF}, s{sQ0}"); A(f"s_mov_b32 s{sKVNX}, s{sKV0}")
A("Lslow_item:")
A(f"s_and_b32 s{sT2}, s{sFLAG}, 1"); A("s_cbranch_scc0 Lslow_next")
for qb in range(NQB):
    A(f"s_add_u32 s{sTMP}, s{sQOFF}, {qb*4096}")
    for ks in range(4): A(qload(QCUR, qb, ks, None).text)
MREG = 56
def slow_load(withv):
    o = []
    for w in range(4):
        o += [f"s_add_u32 m0, s{sMK}, {w*REG}", f"s_add_u32 s{sKV}, s{sU}, {w*2048}", dma("k", 0, 0).text, dma("k", 1, 0).text]
        if withv: o += [f"s_add_u32 m0, s{sMV}, {w*REG}", f"s_add_u32 s{sKV}, s{sU}, {w*256}", dma("v", 0, 0).text, dma("v", 1, 0).text]
    o.append("s_waitcnt vmcnt(0)")
    for j in range(8): o.append(kread(0, j // 4, j % 4))
    o.append("s_waitcnt lgkmcnt(0)")
    if withv:
        for db in range(8): o += [vread(0, db, 0), vread(0, db, 1)]
        o.append("s_waitcnt lgkmcnt(0)")
    return o
for q in range(NQB): A(f"v_mov_b32 {vr(LREG+q)}, 0xff800000")
A(f"s_mov_b32 s{sU}, s{sKVNX}"); A(f"s_mov_b32 s{sT}, 0")
A("Lslow_p1:")
slow += slow_load(False)
for qb in range(NQB):
    slow += qk_mfmas(qb); A("s_nop 7")
    for i in range(4): A(f"v_max3_f32 {vr(LREG+qb)}, {vr(LREG+qb)}, {S(qb%2, 2*i)}, {S(qb%2, 2*i+1)}")
A(f"s_add_u32 s{sU}, s{sU}, 8192"); A(f"s_add_u32 s{sT}, s{sT}, 1"); A(f"s_cmp_lt_u32 s{sT}, {NU}"); A("s_cbranch_scc1 Lslow_p1")
slow += lreduce("max")
for q in range(NQB):
    A(f"v_mul_f32 {vr(MREG+q)}, s{sC}, {vr(LREG+q)}"); A(f"v_mov_b32 {vr(LREG+q)}, 0")
for i in range(32 * NQB): A(f"v_accvgpr_write_b32 {ar(AO+i)}, 0")
A(f"s_mov_b32 s{sU}, s{sKVNX}"); A(f"s_mov_b32 s{sT}, 0")
A("Lslow_p2:")
slow += slow_load(True)
for qb in range(NQB):
    b = qb % 2
    slow += qk_mfmas(qb); A("s_nop 7")
    for i in range(8): A(f"v_fma_f32 {S(b,i)}, {S(b,i)}, s{sC}, -{vr(MREG+qb)}")
    for i in range(8): A(f"v_exp_f32 {S(b,i)}, {S(b,i)}")
    A("s_nop 0")
    for i in range(8): A(f"v_add_f32 {vr(LREG+qb)}, {vr(LREG+qb)}, {S(b,i)}")
    for i in range(4): A(f"v_cvt_pk_bf16_f32 {P(b,i,1)}, {S(b,2*i)}, {S(b,2*i+1)}")
    A("s_nop 1")
    slow += pv_mfmas(NQB + qb)
A(f"s_add_u32 s{sU}, s{sU}, 8192"); A(f"s_add_u32 s{sT}, s{sT}, 1"); A(f"s_cmp_lt_u32 s{sT}, {NU}"); A("s_cbranch_scc1 Lslow_p2")
A("s_nop 7")
slow += lreduce("add")
slow += epilogue(False)
A("Lslow_next:")
A(f"s_add_u32 s{sQOFF}, s{sQOFF}, {256*98304}"); A(f"s_add_u32 s{sKVNX}, s{sKVNX}, {128*131072}")
A(f"s_lshr_b32 s{sFLAG}, s{sFLAG}, 1"); A("s_cbranch_scc1 Lslow_item")
A("Lfin:")

fin = []
if OPT["stamps"]:
    fin += ["s_waitcnt vmcnt(0)"] + stamp(1) + ["s_waitcnt lgkmcnt(0)", f"s_cmp_lg_u32 s{sW}, 0", "s_cbranch_scc1 Lend",
            "s_lshl_b32 s3, s2, 5", "v_mov_b32 v12, s3"]
    for i, r in enumerate([60, 62, 64, 66]):
        fin += [f"v_mov_b32 v14, s{r}", f"v_mov_b32 v15, s{r+1}", f"global_store_dwordx2 v12, v[14:15], s[48:49] offset:{8*i}"]
fin.append("Lend:")

def txt(x):
    if isinstance(x, VM): return x.text
    if isinstance(x, WVM): return f"s_waitcnt vmcnt({x.n})"
    return x
hdr = open("hdr.txt").read() if False else ""
lines = [f"; @launch grid=(256,1,1) block=(256,1,1) lds={LDS}",
         '.amdgcn_target "amdgcn-amd-amdhsa--gfx950"', ".text", f".globl {KN}", ".p2align 8", f".type {KN},@function", f"{KN}:"]
lines += haz.fix([txt(x) for x in pro + body + ([] if OPT["noslow"] else slow) + fin], verbose=True)
open(out_path, "w").write("\n".join(lines) + "\n" + footer(512, 256))
```

```python
import sys, struct, math
from gcom import footer
import haz

OPT = dict(bar2=1, stamps=0, nt_kv=1, nt_q=1, nt_o=0, noslow=0, fine=0, cpf=1, pro=0, la=4, spread=1, pk=1, adj=0)
out_path = sys.argv[1]
for a in sys.argv[2:]:
    k, v = a.split("="); OPT[k] = int(v)

KN = "standalone__gqa_softmax__near_ridge_kernel"
NQB = 6; NU = 16; NSLOT = 8
REG = 2112; SLOT = 4 * REG; VRING = NSLOT * SLOT; LDS = 2 * VRING
LA = OPT["la"]
C = math.log2(math.e) / math.sqrt(128.0)
CBITS = struct.unpack("<I", struct.pack("<f", C))[0]
LO_BITS = (127 - 20) << 23; HI_BITS = (127 + 30) << 23

KADDR, VADDR, VOFFK, VOFFV, VOFFQ = 1, 2, 3, 4, 5
LREG = 6
TMP = 12
SREG = 16
PREG = 32
ET = 40
QCUR = 64; QNXT = 160
AO = 0; AK = 192; AV = 224
sQ, sK, sV, sO = 4, 8, 12, 16
sW, sMK, sMV, sT, sQOFF, sQNX, sKV, sKVNX, sTMP, sFLAG, sC, sMASK, sRNG = 20, 21, 22, 23, 24, 25, 26, 27, 28, 29, 30, 32, 33
sU = 34; sQ0 = 35; sKV0 = 36; sT2 = 37; sBIT = 38; sOP = 39; sOT = 50

def vr(b, n=1): return f"v{b}" if n == 1 else f"v[{b}:{b+n-1}]"
def ar(b, n=1): return f"a{b}" if n == 1 else f"a[{b}:{b+n-1}]"
def srd(b): return f"s[{b}:{b+3}]"
def Q(qb, ks): return vr(QCUR + 16 * qb + 4 * ks, 4)
def Kf(kb, ks): return ar(AK + 16 * kb + 4 * ks, 4)
def Vf(db): return ar(AV + 4 * db, 4)
def O(qb, db): return ar(AO + 32 * qb + 4 * db, 4)
def S(buf, i, n=1): return vr(SREG + 8 * buf + i, n)
def P(buf, i=0, n=4): return vr(PREG + 4 * buf + i, n)
NTKV = " nt" if OPT["nt_kv"] else ""
NTQ = " nt" if OPT["nt_q"] else ""
NTO = " nt" if OPT["nt_o"] else ""

class VM:
    def __init__(s, text, tag): s.text, s.tag = text, tag
class WVM:
    def __init__(s, cond, extra=""): s.cond, s.extra, s.n = cond, extra, 63

def mfma(d, a, b, c): return f"v_mfma_f32_16x16x32_bf16 {d}, {a}, {b}, {c}"
def qk_mfmas(m):
    qb, buf = m % NQB, m % 2
    return [mfma(S(buf, 4 * kb, 4), Kf(kb, ks), Q(qb, ks), "0" if ks == 0 else S(buf, 4 * kb, 4)) for kb in range(2) for ks in range(4)]
def pv_mfmas(n):
    u, qb = divmod(n, NQB)
    return [mfma(O(qb, db), Vf(db), P(n % 2), "0" if u == 0 else O(qb, db)) for db in range(8)]
def kread(slot, kb, ks): return f"ds_read_b128 {Kf(kb, ks)}, {vr(KADDR)} offset:{slot*SLOT + kb*1024 + ks*64}"
def vread(slot, db, hf): return f"ds_read_b64_tr_b16 {ar(AV + 4*db + 2*hf, 2)}, {vr(VADDR)} offset:{slot*SLOT + hf*1024 + (db>>1)*64 + (db&1)*8}"
def dma(kv, j, rel):
    if kv == "k": return VM(f"buffer_load_dwordx4 {vr(VOFFK)}, {srd(sK)}, s{sKV} offen offset:{j*1024}{NTKV} lds", ("kv", rel))
    return VM(f"buffer_load_dwordx4 {vr(VOFFV)}, {srd(sV)}, s{sKV} offen offset:{j*1024}{NTKV} lds", ("kv", rel))
def setm0(kv, slot): return f"s_add_u32 m0, s{sMK if kv == 'k' else sMV}, {slot*SLOT}"
def qload(base, qb, ks, tag): return VM(f"buffer_load_dwordx4 {vr(base + 16*qb + 4*ks, 4)}, {vr(VOFFQ)}, {srd(sQ)}, s{sTMP} offen offset:{ks*64}{NTQ}", tag)

def ostore(reg, soff, e): return VM(f"buffer_store_dwordx4 {vr(reg, 4)}, {vr(VOFFQ)}, {srd(sO)}, s{soff} offen offset:{e*64}{NTO}", ("o",))

def step(n):
    N = NU * NQB
    do_qk, do_sm, do_pv = n + 2 < N, 0 <= n + 1 < N, n >= 0
    qk = qk_mfmas(n + 2) if do_qk else [None] * 8
    pv = pv_mfmas(n) if do_pv else [None] * 8
    before = [[] for _ in range(16)]
    mem = [[] for _ in range(16)]
    val = [[] for _ in range(16)]
    if do_sm:
        m = n + 1; buf = m % 2; u, qb = divmod(m, NQB); l = vr(LREG + qb)
        for i in range(8):
            val[2 * i].append(f"v_exp_f32 {S(buf, i)}, {S(buf, i)}")
            val[2 * i + 1].append(f"v_mov_b32 {l}, {S(buf, i)}" if (u == 0 and i == 0) else f"v_add_f32 {l}, {l}, {S(buf, i)}")
            if i % 2: val[2 * i + 1].append(f"v_cvt_pk_bf16_f32 {P(buf, i // 2, 1)}, {S(buf, i - 1)}, {S(buf, i)}")
    u, ph = divmod(n, NQB)
    if ph == 3 and n >= 0:
        for j in range(8): mem[2 * j + 1 if OPT["pk"] else 2 * j].append(kread((u + 1) % NSLOT, j // 4, j % 4))
    if ph == 4 and do_qk:
        before[0].append("s_waitcnt lgkmcnt(4)"); before[8].append("s_waitcnt lgkmcnt(0)")
    if ph == 5 and n >= 0:
        for db in range(8):
            mem[2 * db + 1].append(vread((u + 1) % NSLOT, db, 0)); mem[2 * db + 1].append(vread((u + 1) % NSLOT, db, 1))
    if ph == 0:
        before[1].append("s_waitcnt lgkmcnt(8)"); before[9].append("s_waitcnt lgkmcnt(0)")
    if n >= 0:
        rel = u + LA
        if ph == 2:
            if not OPT["bar2"]: before[0] += [WVM(("kv", u + 1)), "s_barrier"]
            elif u % 2 == 0:
                if OPT["fine"]: before[0] += ["s_memtime s[70:71]", WVM(("kv", u + 2)), "s_barrier", "s_memtime s[72:73]"]
                else: before[0] += [WVM(("kv", u + 2)), "s_barrier"]
            if rel == NU:
                val[1] += [f"s_mov_b32 s{sKV}, s{sKVNX}", f"s_cmp_lt_u32 s{sT}, 3", f"s_cselect_b32 s{sK+2}, s{sK+2}, 0", f"s_cselect_b32 s{sV+2}, s{sV+2}, 0"]
            val[1].append(setm0("k", rel % NSLOT))
            mem[5].append(dma("k", 0, rel)); mem[9].append(dma("k", 1, rel))
        if ph == 4:
            val[1].append(setm0("v", rel % NSLOT))
            mem[5].append(dma("v", 0, rel)); mem[9].append(dma("v", 1, rel))
            val[13].append(f"s_add_u32 s{sKV}, s{sKV}, 8192")
            if OPT["fine"] and u % 2 == 0:
                val[13] += [f"s_add_u32 m0, s74, {2 + u // 2}", "v_writelane_b32 v0, s70, m0", "v_writelane_b32 v15, s72, m0"]
        if OPT["spread"]:
            sites = [(uu, p) for uu in range(15) for p in (0, 1)]
            seq = [("o", 0)]
            for k in range(12):
                if k + 1 < 12: seq.append(("o", k + 1))
                seq.append(("q", k))
            place = {}
            for i, e in enumerate(seq):
                uu, p = sites[(i * len(sites)) // len(seq)]
                place[(uu, p, 5)] = (e[0], 2 * e[1]); place[(uu, p, 13)] = (e[0], 2 * e[1] + 1)
        else:
            place = {}
            for uu in range(12):
                place[(uu, 0, 5)] = ("o", 2 * uu); place[(uu, 0, 13)] = ("o", 2 * uu + 1)
                place[(uu + 1, 1, 5)] = ("q", 2 * uu); place[(uu + 1, 1, 13)] = ("q", 2 * uu + 1)
        for gp in (5, 13):
            e = place.get((u, ph, gp))
            if not e: continue
            qb, x = divmod(e[1], 4)
            if OPT["adj"] and gp == 13: gp = 5
            if e[0] == "o":
                if x == 0: val[gp - 4].append(f"s_add_u32 s{sOT}, s{sOP}, {qb*4096}")
                mem[gp].append(ostore(QNXT + 16*qb + 4*x, sOT, x))
            else:
                if x == 0: val[gp - 4].append(f"s_add_u32 s{sTMP}, s{sQNX}, {qb*4096}")
                mem[gp].append(qload(QNXT, qb, x, ("q", 1, qb)))
    if n == N - 1:
        red = lreduce("add")
        per = (len(red) + 7) // 8
        for i in range(8): val[2 * i + 1] += red[i * per:(i + 1) * per]
    o = [f"; step {n}"]
    for i in range(16):
        m = qk[i // 2] if i % 2 == 0 else pv[i // 2]
        o += before[i]
        if m: o.append(m)
        o += mem[i] + val[i]
        if not m and i % 2 == 1 and val[i] and val[i - 1] and not before[i] : pass
    return o

def lreduce(op):
    o = []
    ins = "v_add_f32" if op == "add" else "v_max_f32"
    for sw in ("v_permlane32_swap_b32", "v_permlane16_swap_b32"):
        for q in range(NQB): o.append(f"v_mov_b32 {vr(ET + q)}, {vr(LREG + q)}")
        for q in range(NQB): o.append(f"{sw} {vr(LREG + q)}, {vr(ET + q)}")
        for q in range(NQB): o.append(f"{ins} {vr(LREG + q)}, {vr(LREG + q)}, {vr(ET + q)}")
    return o

def finish_l(check):
    o = ["; row sums: range check + reciprocal"]
    if check:
        o.append(f"v_subrev_u32 {vr(TMP)}, s{sRNG}, {vr(LREG)}")
        for q in range(1, NQB):
            o.append(f"v_subrev_u32 {vr(TMP+1)}, s{sRNG}, {vr(LREG+q)}")
            o.append(f"v_max_u32 {vr(TMP)}, {vr(TMP)}, {vr(TMP+1)}")
        o.append(f"v_cmp_lt_u32 vcc, {hex(HI_BITS - LO_BITS)}, {vr(TMP)}")
    for q in range(NQB): o.append(f"v_rcp_f32 {vr(LREG+q)}, {vr(LREG+q)}")
    if check:
        o += [f"s_cmp_lg_u64 vcc, 0", f"s_cselect_b32 s{sT2}, s{sBIT}, 0", f"s_or_b32 s{sFLAG}, s{sFLAG}, s{sT2}"]
    return o

def pack(store):
    o = ["; pack O"]
    k = 0
    for qb in range(NQB):
        if store: o.append(f"s_add_u32 s{sOT}, s{sQOFF}, {qb*4096}")
        lp = LREG + (qb & ~1); sel = "op_sel:[0,1] op_sel_hi:[1,1]" if qb & 1 else "op_sel_hi:[1,0]"
        for e in range(4):
            T = ET + 8 * (k % 2); Dd = QNXT + 16 * qb + 4 * e; k += 1
            for i in range(8): o.append(f"v_accvgpr_read_b32 {vr(T+i)}, {ar(AO + 32*qb + 8*e + i)}")
            for i in range(4): o.append(f"v_pk_mul_f32 {vr(T+2*i, 2)}, {vr(T+2*i, 2)}, {vr(lp, 2)} {sel}")
            for i in range(4): o.append(f"v_cvt_pk_bf16_f32 {vr(Dd+i)}, {vr(T+2*i)}, {vr(T+2*i+1)}")
            if store: o.append(ostore(Dd, sOT, e))
    return o

def qscale(it, extra=None):
    o = ["; scale Q by log2(e)/sqrt(D)"]
    for qb in range(NQB):
        if extra or qb in (0, 4, 5): o.append(WVM(("q", it, qb if (extra or qb) else 3)))
        if extra: o += extra(qb)
        for g in range(4):
            b = 16 * qb + 4 * g; T = ET + 8 * (g % 2)
            for i in range(4):
                o.append(f"v_lshlrev_b32 {vr(T+2*i)}, 16, {vr(QNXT+b+i)}")
                o.append(f"v_and_b32 {vr(T+2*i+1)}, s{sMASK}, {vr(QNXT+b+i)}")
            for i in range(4): o.append(f"v_pk_mul_f32 {vr(T+2*i, 2)}, {vr(T+2*i, 2)}, s[{sC}:{sC+1}]")
            for i in range(4): o.append(f"v_cvt_pk_bf16_f32 {vr(QCUR+b+i)}, {vr(T+2*i)}, {vr(T+2*i+1)}")
    return o

def stamp(i):
    if not OPT["stamps"]: return []
    return [f"s_memtime s[{60+4*i}:{61+4*i}]", f"s_memrealtime s[{62+4*i}:{63+4*i}]"]

pro = []
A = pro.append
A("s_cmp_ge_u32 s2, 256"); A("s_cbranch_scc1 Lend")
A("s_load_dwordx4 s[40:43], s[0:1], 0"); A("s_load_dwordx4 s[44:47], s[0:1], 16")
if OPT["stamps"]:
    A("s_load_dwordx2 s[48:49], s[0:1], 40")
pro += stamp(0)
A("v_lshrrev_b32 v12, 6, v0"); A("v_and_b32 v0, 63, v0")
A(f"v_readfirstlane_b32 s{sW}, v12")
A("v_and_b32 v13, 15, v0"); A("v_lshrrev_b32 v14, 4, v0")
if OPT["cpf"]:
    A("s_getpc_b64 s[52:53]"); A("Lpc:")
    A(f"s_lshr_b32 s{sT2}, s2, 3"); A(f"s_lshl_b32 s{sT2}, s{sT2}, 2"); A(f"s_add_u32 s{sT2}, s{sT2}, s{sW}"); A(f"s_and_b32 s{sT2}, s{sT2}, 63")
    A(f"s_lshl_b32 s{sT2}, s{sT2}, 10"); A(f"s_min_u32 s{sT2}, s{sT2}, Lfin - Lpc - 1024")
    A(f"v_lshlrev_b32 v16, 4, v0"); A(f"v_add_u32 v16, s{sT2}, v16")
    A(VM("global_load_dwordx4 v[20:23], v16, s[52:53]", ("x",)))
A("v_lshrrev_b32 v15, 2, v13"); A(f"v_mul_u32_u24 v{KADDR}, {REG}, v15")
A(f"v_add_u32 v{VADDR}, {VRING}, v{KADDR}")
A("v_and_b32 v15, 3, v13")
A(f"v_lshl_add_u32 v{KADDR}, v15, 8, v{KADDR}")
A("v_xor_b32 v16, v14, v15"); A(f"v_lshl_add_u32 v{KADDR}, v16, 4, v{KADDR}")
A(f"v_lshl_add_u32 v{VADDR}, v14, 8, v{VADDR}"); A(f"v_lshl_add_u32 v{VADDR}, v15, 4, v{VADDR}")
A("v_xor_b32 v16, v13, v14"); A("v_lshlrev_b32 v16, 4, v16"); A(f"v_lshl_add_u32 v{VOFFK}, v14, 8, v16")
A(f"v_lshl_add_u32 v{VOFFK}, v12, 11, v{VOFFK}")
A("v_lshlrev_b32 v16, 4, v13"); A(f"v_lshl_add_u32 v{VOFFV}, v14, 11, v16"); A(f"v_lshl_add_u32 v{VOFFV}, v12, 8, v{VOFFV}")
A(f"v_mul_u32_u24 v16, {16*NQB}, v12"); A("v_add_u32 v16, v16, v13"); A("v_lshlrev_b32 v16, 8, v16"); A(f"v_lshl_add_u32 v{VOFFQ}, v14, 4, v16")
A(f"s_lshr_b32 s{sT2}, s2, 4"); A(f"s_lshl_b32 s{sT2}, s{sT2}, 3"); A(f"s_and_b32 s{sTMP}, s2, 7"); A(f"s_add_u32 s{sT2}, s{sT2}, s{sTMP}")
A(f"s_lshl_b32 s{sKV0}, s{sT2}, 17")
A(f"s_lshl_b32 s{sT2}, s{sT2}, 1"); A(f"s_lshr_b32 s{sTMP}, s2, 3"); A(f"s_and_b32 s{sTMP}, s{sTMP}, 1"); A(f"s_add_u32 s{sT2}, s{sT2}, s{sTMP}")
A(f"s_mul_i32 s{sQ0}, s{sT2}, 98304")
A(f"s_mul_i32 s{sMK}, s{sW}, {REG}"); A(f"s_add_u32 s{sMV}, s{sMK}, {VRING}")
A(f"s_mov_b32 s{sT}, 0"); A(f"s_mov_b32 s{sFLAG}, 0"); A(f"s_mov_b32 s{sBIT}, 1")
A(f"s_mov_b32 s{sC}, {hex(CBITS)}"); A(f"s_mov_b32 s{sC+1}, {hex(CBITS)}"); A(f"s_mov_b32 s{sMASK}, 0xffff0000"); A(f"s_mov_b32 s{sRNG}, {hex(LO_BITS)}")
A(f"s_mov_b32 s{sKV}, s{sKV0}"); A(f"s_mov_b32 s{sQNX}, s{sQ0}"); A(f"s_mov_b32 s{sKVNX}, s{sKV0}")
A("s_waitcnt lgkmcnt(0)")
def build_srds():
    o = []
    for r, p, n in ((sQ, 40, 100663296), (sK, 42, 67108864), (sV, 44, 67108864), (sO, 46, 100663296)):
        o += [f"s_mov_b32 s{r}, s{p}", f"s_mov_b32 s{r+1}, s{p+1}", f"s_mov_b32 s{r+2}, {n}", f"s_mov_b32 s{r+3}, 0x20000"]
    return o
pro += build_srds()
def dma_unit(rel):
    return [setm0("k", rel % NSLOT), "s_nop 0", dma("k", 0, rel), dma("k", 1, rel), setm0("v", rel % NSLOT), "s_nop 0", dma("v", 0, rel), dma("v", 1, rel), f"s_add_u32 s{sKV}, s{sKV}, 8192"]
def pstamp(i):
    if not OPT["fine"]: return []
    return ["s_memtime s[70:71]", "s_waitcnt lgkmcnt(0)", f"v_writelane_b32 v0, s70, {48+i}"]
def qblock_loads(qb): return [f"s_add_u32 s{sTMP}, s{sQNX}, {qb*4096}"] + [qload(QNXT, qb, ks, ("q", 0, qb)) for ks in range(4)]
A(f"s_mov_b32 s{sO+2}, 0")
A(f"s_mov_b32 s{sOP}, 0")
AH = 2 + OPT["pro"]
for qb in range(AH): pro += qblock_loads(qb)
later = [qblock_loads(qb) for qb in range(AH, NQB)] + [dma_unit(r) for r in range(LA)]
def pextra(qb):
    o = pstamp(1 + qb)
    if later: o += later.pop(0)
    return o
pro += pstamp(0)
pro += qscale(0, extra=pextra)
A(WVM(("kv", 0))); A("s_barrier")
for j in range(8): A(kread(0, j // 4, j % 4))
for db in range(8): A(vread(0, db, 0)); A(vread(0, db, 1))
while later: pro += later.pop(0)
A("s_waitcnt lgkmcnt(0)")
if OPT["cpf"]: A(WVM(("x",)))

def fstamp(i):
    if not OPT["fine"]: return []
    return ["s_memtime s[70:71]", f"s_add_u32 m0, s74, {i}", "s_waitcnt lgkmcnt(0)", "v_writelane_b32 v0, s70, m0"]
body = [".p2align 6", "Litem:"]
body += [f"s_mov_b32 s{sQOFF}, s{sQNX}", f"s_add_u32 s{sQNX}, s{sQNX}, {256*98304}", f"s_add_u32 s{sKVNX}, s{sKVNX}, {128*131072}",
         f"s_cmp_lt_u32 s{sT}, 3", f"s_cselect_b32 s{sQ+2}, s{sQ+2}, 0"]
if OPT["fine"]: body += [f"s_mul_i32 s74, s{sT}, 12"]
body += fstamp(0) + fstamp(1)
for n in range(-2, NU * NQB):
    body += step(n)
body += fstamp(10)
body += finish_l(True)
body += [f"s_mov_b32 s{sO+2}, 100663296", f"s_mov_b32 s{sOP}, s{sQOFF}",
         f"s_lshl_b32 s{sBIT}, s{sBIT}, 1", f"s_add_u32 s{sT}, s{sT}, 1", f"s_cmp_eq_u32 s{sT}, 4", "s_cbranch_scc1 Llast"]
body += qscale(1)
body += pack(False)
body += fstamp(11)
body += ["s_branch Litem"]
last = ["Llast:", "s_waitcnt vmcnt(0)"] + pack(True) + fstamp(11)

def resolve():
    hist = []
    def absk(tag, it):
        if tag[0] == "kv": return ("kv", tag[1] + 16 * it)
        if tag[0] == "q": return ("q", tag[1] + it, tag[2])
        return tag
    def run(seq, it):
        for x in seq:
            if isinstance(x, VM): hist.append(absk(x.tag, it))
            elif isinstance(x, WVM):
                c = absk(x.cond, it)
                last = -1
                for i, t in enumerate(hist):
                    if t[0] == c[0] and ((c[0] == "kv" and t[1] <= c[1]) or (c[0] != "kv" and t == c)): last = i
                assert last >= 0, c
                x.n = min(x.n, len(hist) - 1 - last)
    run(pro, 0); run(body, 0); run(body, 1); run(body, 2)
resolve()

slow = []
A = slow.append
A(f"s_cmp_eq_u32 s{sFLAG}, 0"); A("s_cbranch_scc1 Lfin")
A("s_waitcnt vmcnt(0) lgkmcnt(0)"); A("s_barrier")
slow += build_srds()
A(f"s_mul_i32 s{sMK}, s{sW}, {2*SLOT}"); A(f"s_add_u32 s{sMV}, s{sMK}, {VRING}")
A(f"v_add_u32 v{KADDR}, s{sMK}, v{KADDR}"); A(f"v_add_u32 v{VADDR}, s{sMK}, v{VADDR}")
A(f"s_lshl_b32 s{sT2}, s{sW}, 11"); A(f"v_subrev_u32 v{VOFFK}, s{sT2}, v{VOFFK}")
A(f"s_lshl_b32 s{sT2}, s{sW}, 8"); A(f"v_subrev_u32 v{VOFFV}, s{sT2}, v{VOFFV}")
A(f"s_mov_b32 s{sQOFF}, s{sQ0}"); A(f"s_mov_b32 s{sKVNX}, s{sKV0}")
A("Lslow_item:")
A(f"s_and_b32 s{sT2}, s{sFLAG}, 1"); A("s_cbranch_scc0 Lslow_next")
for qb in range(NQB):
    A(f"s_add_u32 s{sTMP}, s{sQOFF}, {qb*4096}")
    for ks in range(4): A(qload(QCUR, qb, ks, None).text)
MREG = 56
def slow_load(withv):
    o = []
    for w in range(4):
        o += [f"s_add_u32 m0, s{sMK}, {w*REG}", f"s_add_u32 s{sKV}, s{sU}, {w*2048}", dma("k", 0, 0).text, dma("k", 1, 0).text]
        if withv: o += [f"s_add_u32 m0, s{sMV}, {w*REG}", f"s_add_u32 s{sKV}, s{sU}, {w*256}", dma("v", 0, 0).text, dma("v", 1, 0).text]
    o.append("s_waitcnt vmcnt(0)")
    for j in range(8): o.append(kread(0, j // 4, j % 4))
    o.append("s_waitcnt lgkmcnt(0)")
    if withv:
        for db in range(8): o += [vread(0, db, 0), vread(0, db, 1)]
        o.append("s_waitcnt lgkmcnt(0)")
    return o
for q in range(NQB): A(f"v_mov_b32 {vr(LREG+q)}, 0xff800000")
A(f"s_mov_b32 s{sU}, s{sKVNX}"); A(f"s_mov_b32 s{sT}, 0")
A("Lslow_p1:")
slow += slow_load(False)
for qb in range(NQB):
    slow += qk_mfmas(qb); A("s_nop 7")
    for i in range(4): A(f"v_max3_f32 {vr(LREG+qb)}, {vr(LREG+qb)}, {S(qb%2, 2*i)}, {S(qb%2, 2*i+1)}")
A(f"s_add_u32 s{sU}, s{sU}, 8192"); A(f"s_add_u32 s{sT}, s{sT}, 1"); A(f"s_cmp_lt_u32 s{sT}, {NU}"); A("s_cbranch_scc1 Lslow_p1")
slow += lreduce("max")
for q in range(NQB):
    A(f"v_mul_f32 {vr(MREG+q)}, s{sC}, {vr(LREG+q)}"); A(f"v_mov_b32 {vr(LREG+q)}, 0")
for i in range(32 * NQB): A(f"v_accvgpr_write_b32 {ar(AO+i)}, 0")
A(f"s_mov_b32 s{sU}, s{sKVNX}"); A(f"s_mov_b32 s{sT}, 0")
A("Lslow_p2:")
slow += slow_load(True)
for qb in range(NQB):
    b = qb % 2
    slow += qk_mfmas(qb); A("s_nop 7")
    for i in range(8): A(f"v_fma_f32 {S(b,i)}, {S(b,i)}, s{sC}, -{vr(MREG+qb)}")
    for i in range(8): A(f"v_exp_f32 {S(b,i)}, {S(b,i)}")
    A("s_nop 0")
    for i in range(8): A(f"v_add_f32 {vr(LREG+qb)}, {vr(LREG+qb)}, {S(b,i)}")
    for i in range(4): A(f"v_cvt_pk_bf16_f32 {P(b,i,1)}, {S(b,2*i)}, {S(b,2*i+1)}")
    A("s_nop 1")
    slow += pv_mfmas(NQB + qb)
A(f"s_add_u32 s{sU}, s{sU}, 8192"); A(f"s_add_u32 s{sT}, s{sT}, 1"); A(f"s_cmp_lt_u32 s{sT}, {NU}"); A("s_cbranch_scc1 Lslow_p2")
A("s_nop 7")
slow += lreduce("add")
slow += finish_l(False) + pack(True)
A("Lslow_next:")
A(f"s_add_u32 s{sQOFF}, s{sQOFF}, {256*98304}"); A(f"s_add_u32 s{sKVNX}, s{sKVNX}, {128*131072}")
A(f"s_lshr_b32 s{sFLAG}, s{sFLAG}, 1"); A("s_cbranch_scc1 Lslow_item")
A("Lfin:")

fin = []
if OPT["stamps"]:
    fin += ["v_mov_b32 v13, v15", "s_waitcnt vmcnt(0)"] + stamp(1) + ["s_waitcnt lgkmcnt(0)", f"s_cmp_lg_u32 s{sW}, 0", "s_cbranch_scc1 Lend",
            "s_lshl_b32 s3, s2, 5", "v_mov_b32 v12, s3"]
    for i, r in enumerate([60, 62, 64, 66]):
        fin += [f"v_mov_b32 v14, s{r}", f"v_mov_b32 v15, s{r+1}", f"global_store_dwordx2 v12, v[14:15], s[48:49] offset:{8*i}"]
    if OPT["fine"]:
        fin += ["v_mbcnt_lo_u32_b32 v12, -1, 0", "v_mbcnt_hi_u32_b32 v12, -1, v12", "v_lshlrev_b32 v12, 2, v12", "s_lshl_b32 s3, s2, 9", "s_add_u32 s3, s3, 65536",
                "v_add_u32 v12, s3, v12", "global_store_dword v12, v0, s[48:49]", "global_store_dword v12, v13, s[48:49] offset:256"]
fin.append("Lend:")

def txt(x):
    if isinstance(x, VM): return x.text
    if isinstance(x, WVM): return f"s_waitcnt vmcnt({x.n})"
    return x
hdr = open("hdr.txt").read() if False else ""
lines = [f"; @launch grid=(256,1,1) block=(256,1,1) lds={LDS}",
         '.amdgcn_target "amdgcn-amd-amdhsa--gfx950"', ".text", f".globl {KN}", ".p2align 8", f".type {KN},@function", f"{KN}:"]
lines += haz.fix([txt(x) for x in pro + body + last + ([] if OPT["noslow"] else slow) + fin], verbose=True)
open(out_path, "w").write("\n".join(lines) + "\n" + footer(512, 256))
```

```python
import sys, struct, math
from gcom import footer
import haz

OPT = dict(bar2=1, stamps=0, nt_kv=1, nt_q=1, nt_o=0, noslow=0, fine=0, cpf=1, pro=1, la=4, spread=1, pk=1, adj=1, spin=0, dbg=0)
out_path = sys.argv[1]
for a in sys.argv[2:]:
    k, v = a.split("="); OPT[k] = int(v)

KN = "standalone__gqa_softmax__near_ridge_kernel"
NQB = 6; NU = 16; NSLOT = 8
REG = 2112; SLOT = 4 * REG; VRING = NSLOT * SLOT; LDS = 2 * VRING
LA = OPT["la"]
C = math.log2(math.e) / math.sqrt(128.0)
CBITS = struct.unpack("<I", struct.pack("<f", C))[0]
LO_BITS = (127 - 20) << 23; HI_BITS = (127 + 30) << 23

KADDR, VADDR, VOFFK, VOFFV, VOFFQ = 1, 2, 3, 4, 5
LREG = 6
TMP = 12
SREG = 16
PREG = 32
ET = 40
QCUR = 64; QNXT = 160
AO = 0; AK = 192; AV = 224
sQ, sK, sV, sO = 4, 8, 12, 16
sW, sMK, sMV, sT, sQOFF, sQNX, sKV, sKVNX, sTMP, sFLAG, sC, sMASK, sRNG = 20, 21, 22, 23, 24, 25, 26, 27, 28, 29, 30, 32, 33
sU = 34; sQ0 = 35; sKV0 = 36; sT2 = 37; sBIT = 38; sOP = 39; sOT = 50

def vr(b, n=1): return f"v{b}" if n == 1 else f"v[{b}:{b+n-1}]"
def ar(b, n=1): return f"a{b}" if n == 1 else f"a[{b}:{b+n-1}]"
def srd(b): return f"s[{b}:{b+3}]"
def Q(qb, ks): return vr(QCUR + 16 * qb + 4 * ks, 4)
def Kf(kb, ks): return ar(AK + 16 * kb + 4 * ks, 4)
def Vf(db): return ar(AV + 4 * db, 4)
def O(qb, db): return ar(AO + 32 * qb + 4 * db, 4)
def S(buf, i, n=1): return vr(SREG + 8 * buf + i, n)
def P(buf, i=0, n=4): return vr(PREG + 4 * buf + i, n)
NTKV = " nt" if OPT["nt_kv"] else ""
NTQ = " nt" if OPT["nt_q"] else ""
NTO = " nt" if OPT["nt_o"] else ""

class VM:
    def __init__(s, text, tag): s.text, s.tag = text, tag
class WVM:
    def __init__(s, cond, extra=""): s.cond, s.extra, s.n = cond, extra, 63

def mfma(d, a, b, c): return f"v_mfma_f32_16x16x32_bf16 {d}, {a}, {b}, {c}"
def qk_mfmas(m):
    qb, buf = m % NQB, m % 2
    return [mfma(S(buf, 4 * kb, 4), Kf(kb, ks), Q(qb, ks), "0" if ks == 0 else S(buf, 4 * kb, 4)) for kb in range(2) for ks in range(4)]
def pv_mfmas(n):
    u, qb = divmod(n, NQB)
    return [mfma(O(qb, db), Vf(db), P(n % 2), "0" if u == 0 else O(qb, db)) for db in range(8)]
def kread(slot, kb, ks): return f"ds_read_b128 {Kf(kb, ks)}, {vr(KADDR)} offset:{slot*SLOT + kb*1024 + ks*64}"
def vread(slot, db, hf): return f"ds_read_b64_tr_b16 {ar(AV + 4*db + 2*hf, 2)}, {vr(VADDR)} offset:{slot*SLOT + hf*1024 + (db>>1)*64 + (db&1)*8}"
def dma(kv, j, rel):
    if kv == "k": return VM(f"buffer_load_dwordx4 {vr(VOFFK)}, {srd(sK)}, s{sKV} offen offset:{j*1024}{NTKV} lds", ("kv", rel))
    return VM(f"buffer_load_dwordx4 {vr(VOFFV)}, {srd(sV)}, s{sKV} offen offset:{j*1024}{NTKV} lds", ("kv", rel))
def setm0(kv, slot): return f"s_add_u32 m0, s{sMK if kv == 'k' else sMV}, {slot*SLOT}"
def qload(base, qb, ks, tag): return VM(f"buffer_load_dwordx4 {vr(base + 16*qb + 4*ks, 4)}, {vr(VOFFQ)}, {srd(sQ)}, s{sTMP} offen offset:{ks*64}{NTQ}", tag)

def ostore(reg, soff, e): return VM(f"buffer_store_dwordx4 {vr(reg, 4)}, {vr(VOFFQ)}, {srd(sO)}, s{soff} offen offset:{e*64}{NTO}", ("o",))

def step(n):
    N = NU * NQB
    do_qk, do_sm, do_pv = n + 2 < N, 0 <= n + 1 < N, n >= 0
    qk = qk_mfmas(n + 2) if do_qk else [None] * 8
    pv = pv_mfmas(n) if do_pv else [None] * 8
    before = [[] for _ in range(16)]
    mem = [[] for _ in range(16)]
    val = [[] for _ in range(16)]
    if do_sm:
        m = n + 1; buf = m % 2; u, qb = divmod(m, NQB); l = vr(LREG + qb)
        for i in range(8):
            val[2 * i].append(f"v_exp_f32 {S(buf, i)}, {S(buf, i)}")
            val[2 * i + 1].append(f"v_mov_b32 {l}, {S(buf, i)}" if (u == 0 and i == 0) else f"v_add_f32 {l}, {l}, {S(buf, i)}")
            if i % 2: val[2 * i + 1].append(f"v_cvt_pk_bf16_f32 {P(buf, i // 2, 1)}, {S(buf, i - 1)}, {S(buf, i)}")
    u, ph = divmod(n, NQB)
    if ph == 3 and n >= 0:
        for j in range(8): mem[2 * j + 1 if OPT["pk"] else 2 * j].append(kread((u + 1) % NSLOT, j // 4, j % 4))
    if ph == 4 and do_qk:
        before[0].append("s_waitcnt lgkmcnt(4)"); before[8].append("s_waitcnt lgkmcnt(0)")
    if ph == 5 and n >= 0:
        for db in range(8):
            mem[2 * db + 1].append(vread((u + 1) % NSLOT, db, 0)); mem[2 * db + 1].append(vread((u + 1) % NSLOT, db, 1))
    if ph == 0:
        before[1].append("s_waitcnt lgkmcnt(8)"); before[9].append("s_waitcnt lgkmcnt(0)")
    if n >= 0:
        rel = u + LA
        if ph == 2:
            if not OPT["bar2"]: before[0] += [WVM(("kv", u + 1)), "s_barrier"]
            elif u % 2 == 0:
                if OPT["fine"]: before[0] += ["s_memtime s[70:71]", WVM(("kv", u + 2)), "s_barrier", "s_memtime s[72:73]"]
                else: before[0] += [WVM(("kv", u + 2)), "s_barrier"]
            if rel == NU:
                val[1] += [f"s_mov_b32 s{sKV}, s{sKVNX}", f"s_cmp_lt_u32 s{sT}, 3", f"s_cselect_b32 s{sK+2}, s{sK+2}, 0", f"s_cselect_b32 s{sV+2}, s{sV+2}, 0"]
            val[1].append(setm0("k", rel % NSLOT))
            mem[5].append(dma("k", 0, rel)); mem[9].append(dma("k", 1, rel))
        if ph == 4:
            val[1].append(setm0("v", rel % NSLOT))
            mem[5].append(dma("v", 0, rel)); mem[9].append(dma("v", 1, rel))
            val[13].append(f"s_add_u32 s{sKV}, s{sKV}, 8192")
            if OPT["fine"] and u % 2 == 0:
                val[13] += [f"s_add_u32 m0, s74, {2 + u // 2}", "v_writelane_b32 v0, s70, m0", "v_writelane_b32 v15, s72, m0"]
        if OPT["spread"]:
            sites = [(uu, p) for uu in range(15) for p in (0, 1)]
            seq = [("o", 0)]
            for k in range(12):
                if k + 1 < 12: seq.append(("o", k + 1))
                seq.append(("q", k))
            place = {}
            for i, e in enumerate(seq):
                uu, p = sites[(i * len(sites)) // len(seq)]
                place[(uu, p, 5)] = (e[0], 2 * e[1]); place[(uu, p, 13)] = (e[0], 2 * e[1] + 1)
        else:
            place = {}
            for uu in range(12):
                place[(uu, 0, 5)] = ("o", 2 * uu); place[(uu, 0, 13)] = ("o", 2 * uu + 1)
                place[(uu + 1, 1, 5)] = ("q", 2 * uu); place[(uu + 1, 1, 13)] = ("q", 2 * uu + 1)
        for gp in (5, 13):
            e = place.get((u, ph, gp))
            if not e: continue
            qb, x = divmod(e[1], 4)
            if OPT["adj"] and gp == 13: gp = 5
            if e[0] == "o":
                if x == 0: val[gp - 4].append(f"s_add_u32 s{sOT}, s{sOP}, {qb*4096}")
                mem[gp].append(ostore(QNXT + 16*qb + 4*x, sOT, x))
            else:
                if x == 0: val[gp - 4].append(f"s_add_u32 s{sTMP}, s{sQNX}, {qb*4096}")
                mem[gp].append(qload(QNXT, qb, x, ("q", 1, qb)))
    if n == N - 1:
        red = lreduce("add")
        per = (len(red) + 7) // 8
        for i in range(8): val[2 * i + 1] += red[i * per:(i + 1) * per]
    o = [f"; step {n}"]
    for i in range(16):
        m = qk[i // 2] if i % 2 == 0 else pv[i // 2]
        o += before[i]
        if m: o.append(m)
        o += mem[i] + val[i]
        if not m and i % 2 == 1 and val[i] and val[i - 1] and not before[i] : pass
    return o

def lreduce(op):
    o = []
    ins = "v_add_f32" if op == "add" else "v_max_f32"
    for sw in ("v_permlane32_swap_b32", "v_permlane16_swap_b32"):
        for q in range(NQB): o.append(f"v_mov_b32 {vr(ET + q)}, {vr(LREG + q)}")
        for q in range(NQB): o.append(f"{sw} {vr(LREG + q)}, {vr(ET + q)}")
        for q in range(NQB): o.append(f"{ins} {vr(LREG + q)}, {vr(LREG + q)}, {vr(ET + q)}")
    return o

def finish_l(check):
    o = ["; row sums: range check + reciprocal"]
    if check:
        o.append(f"v_subrev_u32 {vr(TMP)}, s{sRNG}, {vr(LREG)}")
        for q in range(1, NQB):
            o.append(f"v_subrev_u32 {vr(TMP+1)}, s{sRNG}, {vr(LREG+q)}")
            o.append(f"v_max_u32 {vr(TMP)}, {vr(TMP)}, {vr(TMP+1)}")
        o.append(f"v_cmp_lt_u32 vcc, {hex(HI_BITS - LO_BITS)}, {vr(TMP)}")
    for q in range(NQB): o.append(f"v_rcp_f32 {vr(LREG+q)}, {vr(LREG+q)}")
    if check:
        o += [f"s_cmp_lg_u64 vcc, 0", f"s_cselect_b32 s{sT2}, s{sBIT}, 0", f"s_or_b32 s{sFLAG}, s{sFLAG}, s{sT2}"]
    return o

def pack(store):
    o = ["; pack O"]
    k = 0
    for qb in range(NQB):
        if store: o.append(f"s_add_u32 s{sOT}, s{sQOFF}, {qb*4096}")
        lp = LREG + (qb & ~1); sel = "op_sel:[0,1] op_sel_hi:[1,1]" if qb & 1 else "op_sel_hi:[1,0]"
        for e in range(4):
            T = ET + 8 * (k % 2); Dd = QNXT + 16 * qb + 4 * e; k += 1
            for i in range(8): o.append(f"v_accvgpr_read_b32 {vr(T+i)}, {ar(AO + 32*qb + 8*e + i)}")
            for i in range(4): o.append(f"v_pk_mul_f32 {vr(T+2*i, 2)}, {vr(T+2*i, 2)}, {vr(lp, 2)} {sel}")
            for i in range(4): o.append(f"v_cvt_pk_bf16_f32 {vr(Dd+i)}, {vr(T+2*i)}, {vr(T+2*i+1)}")
            if store: o.append(ostore(Dd, sOT, e))
    return o

def qscale(it, extra=None):
    o = ["; scale Q by log2(e)/sqrt(D)"]
    for qb in range(NQB):
        if extra or qb in (0, 4, 5): o.append(WVM(("q", it, qb if (extra or qb) else 3)))
        if extra: o += extra(qb)
        for g in range(4):
            b = 16 * qb + 4 * g; T = ET + 8 * (g % 2)
            for i in range(4):
                o.append(f"v_lshlrev_b32 {vr(T+2*i)}, 16, {vr(QNXT+b+i)}")
                o.append(f"v_and_b32 {vr(T+2*i+1)}, s{sMASK}, {vr(QNXT+b+i)}")
            for i in range(4): o.append(f"v_pk_mul_f32 {vr(T+2*i, 2)}, {vr(T+2*i, 2)}, s[{sC}:{sC+1}]")
            for i in range(4): o.append(f"v_cvt_pk_bf16_f32 {vr(QCUR+b+i)}, {vr(T+2*i)}, {vr(T+2*i+1)}")
    return o

def stamp(i):
    if not OPT["stamps"]: return []
    return [f"s_memtime s[{60+4*i}:{61+4*i}]", f"s_memrealtime s[{62+4*i}:{63+4*i}]"]

pro = []
A = pro.append
A("s_cmp_ge_u32 s2, 256"); A("s_cbranch_scc1 Lend")
A("s_load_dwordx4 s[40:43], s[0:1], 0"); A("s_load_dwordx4 s[44:47], s[0:1], 16")
if OPT["stamps"]:
    A("s_load_dwordx2 s[48:49], s[0:1], 40")
pro += stamp(0)
if OPT["spin"] or OPT["dbg"]: A("s_memrealtime s[80:81]"); A("s_memtime s[84:85]"); A("s_load_dwordx2 s[88:89], s[0:1], 32")
A("v_lshrrev_b32 v12, 6, v0"); A("v_and_b32 v0, 63, v0")
A(f"v_readfirstlane_b32 s{sW}, v12")
A("v_and_b32 v13, 15, v0"); A("v_lshrrev_b32 v14, 4, v0")
if OPT["cpf"]:
    A("s_getpc_b64 s[52:53]"); A("Lpc:")
    A(f"s_lshr_b32 s{sT2}, s2, 3"); A(f"s_lshl_b32 s{sT2}, s{sT2}, 2"); A(f"s_add_u32 s{sT2}, s{sT2}, s{sW}"); A(f"s_and_b32 s{sT2}, s{sT2}, 63")
    A(f"s_lshl_b32 s{sT2}, s{sT2}, 10"); A(f"s_min_u32 s{sT2}, s{sT2}, Lfin - Lpc - 1024")
    A(f"v_lshlrev_b32 v16, 4, v0"); A(f"v_add_u32 v16, s{sT2}, v16")
    A(VM("global_load_dwordx4 v[20:23], v16, s[52:53]", ("x",)))
A("v_lshrrev_b32 v15, 2, v13"); A(f"v_mul_u32_u24 v{KADDR}, {REG}, v15")
A(f"v_add_u32 v{VADDR}, {VRING}, v{KADDR}")
A("v_and_b32 v15, 3, v13")
A(f"v_lshl_add_u32 v{KADDR}, v15, 8, v{KADDR}")
A("v_xor_b32 v16, v14, v15"); A(f"v_lshl_add_u32 v{KADDR}, v16, 4, v{KADDR}")
A(f"v_lshl_add_u32 v{VADDR}, v14, 8, v{VADDR}"); A(f"v_lshl_add_u32 v{VADDR}, v15, 4, v{VADDR}")
A("v_xor_b32 v16, v13, v14"); A("v_lshlrev_b32 v16, 4, v16"); A(f"v_lshl_add_u32 v{VOFFK}, v14, 8, v16")
A(f"v_lshl_add_u32 v{VOFFK}, v12, 11, v{VOFFK}")
A("v_lshlrev_b32 v16, 4, v13"); A(f"v_lshl_add_u32 v{VOFFV}, v14, 11, v16"); A(f"v_lshl_add_u32 v{VOFFV}, v12, 8, v{VOFFV}")
A(f"v_mul_u32_u24 v16, {16*NQB}, v12"); A("v_add_u32 v16, v16, v13"); A("v_lshlrev_b32 v16, 8, v16"); A(f"v_lshl_add_u32 v{VOFFQ}, v14, 4, v16")
A(f"s_lshr_b32 s{sT2}, s2, 4"); A(f"s_lshl_b32 s{sT2}, s{sT2}, 3"); A(f"s_and_b32 s{sTMP}, s2, 7"); A(f"s_add_u32 s{sT2}, s{sT2}, s{sTMP}")
A(f"s_lshl_b32 s{sKV0}, s{sT2}, 17")
A(f"s_lshl_b32 s{sT2}, s{sT2}, 1"); A(f"s_lshr_b32 s{sTMP}, s2, 3"); A(f"s_and_b32 s{sTMP}, s{sTMP}, 1"); A(f"s_add_u32 s{sT2}, s{sT2}, s{sTMP}")
A(f"s_mul_i32 s{sQ0}, s{sT2}, 98304")
A(f"s_mul_i32 s{sMK}, s{sW}, {REG}"); A(f"s_add_u32 s{sMV}, s{sMK}, {VRING}")
A(f"s_mov_b32 s{sT}, 0"); A(f"s_mov_b32 s{sFLAG}, 0"); A(f"s_mov_b32 s{sBIT}, 1")
A(f"s_mov_b32 s{sC}, {hex(CBITS)}"); A(f"s_mov_b32 s{sC+1}, {hex(CBITS)}"); A(f"s_mov_b32 s{sMASK}, 0xffff0000"); A(f"s_mov_b32 s{sRNG}, {hex(LO_BITS)}")
A(f"s_mov_b32 s{sKV}, s{sKV0}"); A(f"s_mov_b32 s{sQNX}, s{sQ0}"); A(f"s_mov_b32 s{sKVNX}, s{sKV0}")
A("s_waitcnt lgkmcnt(0)")
def build_srds():
    o = []
    for r, p, n in ((sQ, 40, 100663296), (sK, 42, 67108864), (sV, 44, 67108864), (sO, 46, 100663296)):
        o += [f"s_mov_b32 s{r}, s{p}", f"s_mov_b32 s{r+1}, s{p+1}", f"s_mov_b32 s{r+2}, {n}", f"s_mov_b32 s{r+3}, 0x20000"]
    return o
pro += build_srds()
def dma_unit(rel):
    return [setm0("k", rel % NSLOT), "s_nop 0", dma("k", 0, rel), dma("k", 1, rel), setm0("v", rel % NSLOT), "s_nop 0", dma("v", 0, rel), dma("v", 1, rel), f"s_add_u32 s{sKV}, s{sKV}, 8192"]
def pstamp(i):
    if not OPT["fine"]: return []
    return ["s_memtime s[70:71]", "s_waitcnt lgkmcnt(0)", f"v_writelane_b32 v0, s70, {48+i}"]
def qblock_loads(qb): return [f"s_add_u32 s{sTMP}, s{sQNX}, {qb*4096}"] + [qload(QNXT, qb, ks, ("q", 0, qb)) for ks in range(4)]
A(f"s_mov_b32 s{sO+2}, 0")
A(f"s_mov_b32 s{sOP}, 0")
AH = 2 + OPT["pro"]
for qb in range(AH): pro += qblock_loads(qb)
later = [qblock_loads(qb) for qb in range(AH, NQB)] + [dma_unit(r) for r in range(LA)]
def pextra(qb):
    o = pstamp(1 + qb)
    if later: o += later.pop(0)
    return o
pro += pstamp(0)
pro += qscale(0, extra=pextra)
A(WVM(("kv", 0))); A("s_barrier")
for j in range(8): A(kread(0, j // 4, j % 4))
for db in range(8): A(vread(0, db, 0)); A(vread(0, db, 1))
while later: pro += later.pop(0)
A("s_waitcnt lgkmcnt(0)")
if OPT["cpf"]: A(WVM(("x",)))

def fstamp(i):
    if not OPT["fine"]: return []
    return ["s_memtime s[70:71]", f"s_add_u32 m0, s74, {i}", "s_waitcnt lgkmcnt(0)", "v_writelane_b32 v0, s70, m0"]
body = [".p2align 6", "Litem:"]
body += [f"s_mov_b32 s{sQOFF}, s{sQNX}", f"s_add_u32 s{sQNX}, s{sQNX}, {256*98304}", f"s_add_u32 s{sKVNX}, s{sKVNX}, {128*131072}",
         f"s_cmp_lt_u32 s{sT}, 3", f"s_cselect_b32 s{sQ+2}, s{sQ+2}, 0"]
if OPT["fine"]: body += [f"s_mul_i32 s74, s{sT}, 12"]
body += fstamp(0) + fstamp(1)
for n in range(-2, NU * NQB):
    body += step(n)
body += fstamp(10)
body += finish_l(True)
body += [f"s_mov_b32 s{sO+2}, 100663296", f"s_mov_b32 s{sOP}, s{sQOFF}",
         f"s_lshl_b32 s{sBIT}, s{sBIT}, 1", f"s_add_u32 s{sT}, s{sT}, 1", f"s_cmp_eq_u32 s{sT}, 4", "s_cbranch_scc1 Llast"]
body += qscale(1)
body += pack(False)
body += fstamp(11)
body += ["s_branch Litem"]
last = ["Llast:", "s_waitcnt vmcnt(0)"] + pack(True) + fstamp(11)

def resolve():
    hist = []
    def absk(tag, it):
        if tag[0] == "kv": return ("kv", tag[1] + 16 * it)
        if tag[0] == "q": return ("q", tag[1] + it, tag[2])
        return tag
    def run(seq, it):
        for x in seq:
            if isinstance(x, VM): hist.append(absk(x.tag, it))
            elif isinstance(x, WVM):
                c = absk(x.cond, it)
                last = -1
                for i, t in enumerate(hist):
                    if t[0] == c[0] and ((c[0] == "kv" and t[1] <= c[1]) or (c[0] != "kv" and t == c)): last = i
                assert last >= 0, c
                x.n = min(x.n, len(hist) - 1 - last)
    run(pro, 0); run(body, 0); run(body, 1); run(body, 2)
resolve()

slow = []
A = slow.append
A(f"s_cmp_eq_u32 s{sFLAG}, 0"); A("s_cbranch_scc1 Lfin")
A("s_waitcnt vmcnt(0) lgkmcnt(0)"); A("s_barrier")
slow += build_srds()
A(f"s_mul_i32 s{sMK}, s{sW}, {2*SLOT}"); A(f"s_add_u32 s{sMV}, s{sMK}, {VRING}")
A(f"v_add_u32 v{KADDR}, s{sMK}, v{KADDR}"); A(f"v_add_u32 v{VADDR}, s{sMK}, v{VADDR}")
A(f"s_lshl_b32 s{sT2}, s{sW}, 11"); A(f"v_subrev_u32 v{VOFFK}, s{sT2}, v{VOFFK}")
A(f"s_lshl_b32 s{sT2}, s{sW}, 8"); A(f"v_subrev_u32 v{VOFFV}, s{sT2}, v{VOFFV}")
A(f"s_mov_b32 s{sQOFF}, s{sQ0}"); A(f"s_mov_b32 s{sKVNX}, s{sKV0}")
A("Lslow_item:")
A(f"s_and_b32 s{sT2}, s{sFLAG}, 1"); A("s_cbranch_scc0 Lslow_next")
for qb in range(NQB):
    A(f"s_add_u32 s{sTMP}, s{sQOFF}, {qb*4096}")
    for ks in range(4): A(qload(QCUR, qb, ks, None).text)
MREG = 56
def slow_load(withv):
    o = []
    for w in range(4):
        o += [f"s_add_u32 m0, s{sMK}, {w*REG}", f"s_add_u32 s{sKV}, s{sU}, {w*2048}", dma("k", 0, 0).text, dma("k", 1, 0).text]
        if withv: o += [f"s_add_u32 m0, s{sMV}, {w*REG}", f"s_add_u32 s{sKV}, s{sU}, {w*256}", dma("v", 0, 0).text, dma("v", 1, 0).text]
    o.append("s_waitcnt vmcnt(0)")
    for j in range(8): o.append(kread(0, j // 4, j % 4))
    o.append("s_waitcnt lgkmcnt(0)")
    if withv:
        for db in range(8): o += [vread(0, db, 0), vread(0, db, 1)]
        o.append("s_waitcnt lgkmcnt(0)")
    return o
for q in range(NQB): A(f"v_mov_b32 {vr(LREG+q)}, 0xff800000")
A(f"s_mov_b32 s{sU}, s{sKVNX}"); A(f"s_mov_b32 s{sT}, 0")
A("Lslow_p1:")
slow += slow_load(False)
for qb in range(NQB):
    slow += qk_mfmas(qb); A("s_nop 7")
    for i in range(4): A(f"v_max3_f32 {vr(LREG+qb)}, {vr(LREG+qb)}, {S(qb%2, 2*i)}, {S(qb%2, 2*i+1)}")
A(f"s_add_u32 s{sU}, s{sU}, 8192"); A(f"s_add_u32 s{sT}, s{sT}, 1"); A(f"s_cmp_lt_u32 s{sT}, {NU}"); A("s_cbranch_scc1 Lslow_p1")
slow += lreduce("max")
for q in range(NQB):
    A(f"v_mul_f32 {vr(MREG+q)}, s{sC}, {vr(LREG+q)}"); A(f"v_mov_b32 {vr(LREG+q)}, 0")
for i in range(32 * NQB): A(f"v_accvgpr_write_b32 {ar(AO+i)}, 0")
A(f"s_mov_b32 s{sU}, s{sKVNX}"); A(f"s_mov_b32 s{sT}, 0")
A("Lslow_p2:")
slow += slow_load(True)
for qb in range(NQB):
    b = qb % 2
    slow += qk_mfmas(qb); A("s_nop 7")
    for i in range(8): A(f"v_fma_f32 {S(b,i)}, {S(b,i)}, s{sC}, -{vr(MREG+qb)}")
    for i in range(8): A(f"v_exp_f32 {S(b,i)}, {S(b,i)}")
    A("s_nop 0")
    for i in range(8): A(f"v_add_f32 {vr(LREG+qb)}, {vr(LREG+qb)}, {S(b,i)}")
    for i in range(4): A(f"v_cvt_pk_bf16_f32 {P(b,i,1)}, {S(b,2*i)}, {S(b,2*i+1)}")
    A("s_nop 1")
    slow += pv_mfmas(NQB + qb)
A(f"s_add_u32 s{sU}, s{sU}, 8192"); A(f"s_add_u32 s{sT}, s{sT}, 1"); A(f"s_cmp_lt_u32 s{sT}, {NU}"); A("s_cbranch_scc1 Lslow_p2")
A("s_nop 7")
slow += lreduce("add")
slow += finish_l(False) + pack(True)
A("Lslow_next:")
A(f"s_add_u32 s{sQOFF}, s{sQOFF}, {256*98304}"); A(f"s_add_u32 s{sKVNX}, s{sKVNX}, {128*131072}")
A(f"s_lshr_b32 s{sFLAG}, s{sFLAG}, 1"); A("s_cbranch_scc1 Lslow_item")
A("Lfin:")

fin = []
if OPT["dbg"]:
    fin += ["s_waitcnt vmcnt(0)", "s_memrealtime s[82:83]", "s_memtime s[86:87]", "s_waitcnt lgkmcnt(0)", "s_sub_u32 s82, s82, s80", "s_sub_u32 s86, s86, s84",
            "s_cmp_ge_u32 s2, 8", "s_cbranch_scc1 Lnodbg", "s_lshl_b32 s3, s2, 3", "v_mov_b32 v12, s3", "v_mov_b32 v14, s82", "v_mov_b32 v15, s86",
            "global_store_dwordx2 v12, v[14:15], s[88:89]", "Lnodbg:"]
if OPT["spin"]:
    fin += ["Lspin:", "s_memrealtime s[82:83]", "s_waitcnt lgkmcnt(0)", "s_sub_u32 s82, s82, s80", f"s_cmp_lt_u32 s82, {OPT['spin']}", "s_cbranch_scc1 Lspin"]
if OPT["stamps"]:
    fin += ["v_mov_b32 v13, v15", "s_waitcnt vmcnt(0)"] + stamp(1) + ["s_waitcnt lgkmcnt(0)", f"s_cmp_lg_u32 s{sW}, 0", "s_cbranch_scc1 Lend",
            "s_lshl_b32 s3, s2, 5", "v_mov_b32 v12, s3"]
    for i, r in enumerate([60, 62, 64, 66]):
        fin += [f"v_mov_b32 v14, s{r}", f"v_mov_b32 v15, s{r+1}", f"global_store_dwordx2 v12, v[14:15], s[48:49] offset:{8*i}"]
    if OPT["fine"]:
        fin += ["v_mbcnt_lo_u32_b32 v12, -1, 0", "v_mbcnt_hi_u32_b32 v12, -1, v12", "v_lshlrev_b32 v12, 2, v12", "s_lshl_b32 s3, s2, 9", "s_add_u32 s3, s3, 65536",
                "v_add_u32 v12, s3, v12", "global_store_dword v12, v0, s[48:49]", "global_store_dword v12, v13, s[48:49] offset:256"]
fin.append("Lend:")

def txt(x):
    if isinstance(x, VM): return x.text
    if isinstance(x, WVM): return f"s_waitcnt vmcnt({x.n})"
    return x
hdr = open("hdr.txt").read() if False else ""
lines = [f"; @launch grid=(256,1,1) block=(256,1,1) lds={LDS}",
         '.amdgcn_target "amdgcn-amd-amdhsa--gfx950"', ".text", f".globl {KN}", ".p2align 8", f".type {KN},@function", f"{KN}:"]
lines += haz.fix([txt(x) for x in pro + body + last + ([] if OPT["noslow"] else slow) + fin], verbose=True)
open(out_path, "w").write("\n".join(lines) + "\n" + footer(512, 256))
```

```python
import re
TRANS = ("v_exp_f32", "v_rcp_f32", "v_log_f32", "v_rsq_f32", "v_sqrt_f32")
def regs(tok):
    tok = tok.strip().lstrip("-")
    m = re.fullmatch(r"([vas])(\d+)", tok)
    if m: return {(m.group(1), int(m.group(2)))}
    m = re.fullmatch(r"([vas])\[(\d+):(\d+)\]", tok)
    if m: return {(m.group(1), i) for i in range(int(m.group(2)), int(m.group(3)) + 1)}
    if tok == "vcc": return {("s", 106), ("s", 107)}
    if tok == "m0": return {("s", 124)}
    return set()
class I:
    def __init__(s, text):
        s.text = text
        t = text.split(";")[0].strip()
        s.op = t.split()[0] if t else ""
        s.real = bool(t) and not t.endswith(":") and not t.startswith(".")
        rest = t[len(s.op):]
        ops = [x.strip() for x in rest.split(",")]
        ops = [o.split()[0] if o else "" for o in ops]
        s.w = set(); s.r = set(); s.kind = "o"; s.C = set(); s.AB = set(); s.data = set()
        op = s.op
        if op.startswith("v_mfma"):
            s.kind = "mfma"; s.w = regs(ops[0]); s.AB = regs(ops[1]) | regs(ops[2]); s.C = regs(ops[3]); s.r = s.AB | s.C
            s.passes = 4 if "16x16x32" in op else 8
        elif op.startswith("v_"):
            s.kind = "valu"; s.w = regs(ops[0])
            for o in ops[1:]: s.r |= regs(o)
            if "permlane" in op: s.w |= regs(ops[1]); s.r |= regs(ops[0])
            if op.startswith("v_fmac") or op.startswith("v_dot2c"): s.r |= regs(ops[0])
            if op.startswith("v_cndmask") and len(ops) == 3: s.r |= regs("vcc")
        elif op.startswith("ds_read"):
            s.kind = "ds"; s.w = regs(ops[0]); s.r = regs(ops[1])
        elif op.startswith("ds_write"):
            s.kind = "ds"; s.r = regs(ops[0]) | regs(ops[1])
        elif op.startswith("buffer_load"):
            s.kind = "vmem"; s.lds = t.endswith("lds")
            if s.lds:
                for o in ops: s.r |= regs(o)
                s.r |= regs("m0")
            else:
                s.w = regs(ops[0])
                for o in ops[1:]: s.r |= regs(o)
        elif op.startswith("global_load"):
            s.kind = "vmem"; s.w = regs(ops[0])
            for o in ops[1:]: s.r |= regs(o)
        elif op.startswith("buffer_store") or op.startswith("global_store"):
            s.kind = "vmem"
            for o in ops: s.r |= regs(o)
            if "x4" in op or "x3" in op: s.data = regs(ops[0] if op.startswith("buffer") else ops[1])
        elif op.startswith("s_"):
            s.kind = "salu"
            if not op.startswith(("s_cmp", "s_waitcnt", "s_nop", "s_barrier", "s_cbranch", "s_branch", "s_setprio", "s_endpgm")): s.w = regs(ops[0])
        s.states = 1
        if op == "s_nop": s.states = int(ops[0], 0) + 1
def need(p, c):
    n = 0
    vw = {x for x in p.w if x[0] != "s"}; sw = {x for x in p.w if x[0] == "s"}
    if p.kind == "valu":
        if c.kind == "mfma" and vw & c.r: n = max(n, 2)
        if p.op.startswith(TRANS) and c.kind == "valu" and not c.op.startswith(TRANS) and vw & c.r: n = max(n, 1)
        if "permlane" in c.op and vw & c.r: n = max(n, 2)
        if c.op.startswith(("v_readfirstlane", "v_readlane")) and vw & c.r: n = max(n, 1)
        if c.kind == "vmem" and sw & c.r: n = max(n, 5)
        if c.kind == "valu" and sw & c.r: n = max(n, 2)
    if p.kind == "mfma":
        big = {4: 8, 8: 12}[p.passes]
        if c.kind in ("valu", "ds", "vmem") and vw & (c.r | c.w): n = max(n, big)
        if c.kind == "mfma":
            if vw & c.AB: n = max(n, big)
            if vw & c.C and not (c.C == vw and c.passes == p.passes): n = max(n, big - 2)
            if vw & c.w and not (vw & c.C): n = max(n, big)
        if c.kind == "valu" and p.C & c.w: n = max(n, {4: 3, 8: 7}[p.passes])
    if p.data and (p.data & c.w): n = max(n, 2)
    if p.kind == "salu" and ("s", 124) in p.w and c.kind == "vmem" and ("s", 124) in c.r: n = max(n, 1)
    return n
def fix(lines, verbose=False):
    out = []; hist = []
    added = 0
    for t in lines:
        c = I(t)
        if c.real:
            d = 0; short = 0
            for p in reversed(hist[-14:]):
                k = need(p, c) - d
                if k > short: short = k; why = p.text
                d += p.states
            if short > 0:
                if verbose: print("haz: +%d before [%s] after [%s]" % (short, t, why))
                nop = I(f"s_nop {short-1}"); out.append(nop.text); hist.append(nop); added += 1
            hist.append(c)
        out.append(t)
    return out

def scoreboard(lines):
    q = {"vm": [], "lg": []}
    for t in lines:
        c = I(t)
        if not c.real: continue
        if c.op == "s_waitcnt":
            for nm, k in (("vmcnt", "vm"), ("lgkmcnt", "lg")):
                m = re.search(nm + r"\((\d+)\)", t)
                if m:
                    n = int(m.group(1))
                    q[k] = q[k][len(q[k]) - n:] if n and len(q[k]) > n else ([] if n == 0 else q[k])
            continue
        for k in q:
            for p in q[k]:
                hit = p.w & (c.r | c.w)
                same = (k == "lg" and c.kind == "ds" and not (p.w & c.r))
                assert not hit or same, "unwaited load [%s] touched by [%s]" % (p.text, t)
        if c.kind == "ds": q["lg"].append(c)
        elif c.kind == "vmem": q["vm"].append(c)
```

```python
import sys, struct, math
from gcom import footer
import haz

OPT = dict(stamps=0, fine=0, nt_kv=1, nt_q=1, nt_o=0, cpf=1, la=4, rs=1, chain=0, hid=9, ah=6, dbg=0, spin=0,
           o0=-4, op=29, q0=-6, qp=29, ql=12, qr0=14, omode=0, verbose=0, kill=0)
out_path = sys.argv[1]
for a in sys.argv[2:]:
    k, v = a.split("="); assert k in OPT, k; OPT[k] = int(v)

KN = "standalone__gqa_softmax__near_ridge_kernel"
NQB = 6; NU = 16; NSLOT = 8; NS = NU * NQB
REG = 2112; SLOT = 4 * REG; VRING = NSLOT * SLOT; SCR = 2 * VRING; SCRW = 6400; NBUF = 2 if OPT["omode"] == 1 else 3; LDS = SCR + 4 * SCRW
LA = OPT["la"]; RS = OPT["rs"]; NG = 17 if RS else 16
C = math.log2(math.e) / math.sqrt(128.0)
CBITS = struct.unpack("<I", struct.pack("<f", C))[0]
LO_BITS = (127 - 20) << 23; HI_BITS = (127 + 30) << 23
QBYTES = 100663296; KBYTES = 67108864

KADDR, VADDR, VOFFK, VOFFV, VOFF2, OWADDR, ORADDR, QRADDR, CHK, RL = 1, 2, 3, 4, 5, 6, 7, 8, 9, 10
LREG = 12; SEL = 20; SREG = 32; PREG = 48; ET = 56
QCUR = 64; QN = 160
AO = 0; AK = 192; AV = 224
sQ, sK, sV, sO = 4, 8, 12, 16
sW, sMK, sMV, sT, sQOFF, sQNX, sKV, sKVNX, sTMP, sFLAG, sC, sMASK, sRNG = 20, 21, 22, 23, 24, 25, 26, 27, 28, 29, 30, 32, 33
sU = 34; sQ0 = 35; sKV0 = 36; sT2 = 37; sBIT = 38; sOP = 39; sOT = 50; sMS = 51

def vr(b, n=1): return f"v{b}" if n == 1 else f"v[{b}:{b+n-1}]"
def ar(b, n=1): return f"a{b}" if n == 1 else f"a[{b}:{b+n-1}]"
def srd(b): return f"s[{b}:{b+3}]"
def Q(qb, ks): return vr(QCUR + 16 * qb + 4 * ks, 4)
def Kf(kb, ks): return ar(AK + 16 * kb + 4 * ks, 4)
def Vf(db): return ar(AV + 4 * db, 4)
def O(qb, db): return ar(AO + 32 * qb + 4 * db, 4)
def S(buf, i, n=1): return vr(SREG + 8 * buf + i, n)
def P(buf, i=0, n=4): return vr(PREG + 4 * buf + i, n)
def Lr(qb): return LREG + (4 * (qb // 3) + qb % 3 if RS else qb)
NTKV = " nt" if OPT["nt_kv"] else ""; NTQ = " nt" if OPT["nt_q"] else ""; NTO = " nt" if OPT["nt_o"] else ""

class Op:
    def __init__(s, cls, text, tag): s.cls, s.text, s.tag = cls, text, tag
class Wt:
    def __init__(s, cls, cond): s.cls, s.cond, s.n = cls, cond, (63 if cls == "vm" else 15)
def cost(x):
    if isinstance(x, Op): return (8 if x.tag[0] == "o" else 3) if x.cls == "vm" else 1
    if isinstance(x, Wt): return 1
    if x.startswith(";"): return 0
    if x.startswith(("v_exp", "v_rcp", "v_permlane")): return 2
    if x.startswith("s_barrier"): return 8
    return 1

def mfma(d, a, b, c): return f"v_mfma_f32_16x16x32_bf16 {d}, {a}, {b}, {c}"
def qk_mfmas(m):
    qb, buf = m % NQB, m % 2
    return [mfma(S(buf, 4 * kb, 4), Kf(kb, ks), Q(qb, ks), "0" if ks == 0 else S(buf, 4 * kb, 4)) for kb in range(2) for ks in range(4)]
def pv_mfmas(n):
    u, qb = divmod(n % NS, NQB)
    return [mfma(O(qb, db), Vf(db), P(n % 2), "0" if u == 0 else O(qb, db)) for db in range(8)]
def rs_mfma(n):
    u, qb = divmod(n % NS, NQB); L = vr(LREG + 4 * (qb // 3), 4)
    return mfma(L, vr(SEL + 4 * (qb % 3), 4), P(n % 2), "0" if (u == 0 and qb % 3 == 0) else L)
def kread(u, j): return Op("lg", f"ds_read_b128 {Kf(j//4, j%4)}, {vr(KADDR)} offset:{(u%NSLOT)*SLOT + (j//4)*1024 + (j%4)*64}", ("k", u, j))
def vread(u, db, hf): return Op("lg", f"ds_read_b64_tr_b16 {ar(AV + 4*db + 2*hf, 2)}, {vr(VADDR)} offset:{(u%NSLOT)*SLOT + hf*1024 + (db>>1)*64 + (db&1)*8}", ("v", u, db))
def dma(kv, j, rel):
    vo, sr = (VOFFK, sK) if kv == "k" else (VOFFV, sV)
    return Op("vm", f"buffer_load_dwordx4 {vr(vo)}, {srd(sr)}, s{sKV} offen offset:{j*1024}{NTKV} lds", ("kv", rel))
def setm0(kv, u): return f"s_add_u32 m0, s{sMK if kv == 'k' else sMV}, {(u%NSLOT)*SLOT}"
def qdma(h, j, it): return Op("vm", f"buffer_load_dwordx4 {vr(VOFF2)}, {srd(sQ)}, s{sTMP} offen offset:{j*2048 + (h&1)*128}{NTQ} lds", ("q", it, h))
def qm0(base_s, buf, h, j):
    c = buf - j * 1024 - (h & 1) * 128
    return f"s_add_u32 m0, s{base_s}, {c}" if c >= 0 else f"s_sub_u32 m0, s{base_s}, {-c}"
def qread(h, x, off, it, addr=QRADDR): return Op("lg", f"ds_read_b128 {vr(QN + 8*h + 4*x, 4)}, {vr(addr)} offset:{off + x*64}", ("qr", it, h))
def owrite(h, x, it): return Op("lg", f"ds_write_b128 {vr(OWADDR)}, {vr(QN + 8*h + 4*x, 4)} offset:{x*64}", ("ow", it, h))
def oread(h, j, it): return Op("lg", f"ds_read_b128 {vr(QN + 8*h + 4*j, 4)}, {vr(ORADDR)} offset:{j*1152}", ("or", it, h))
def ostore(h, j):
    if OPT["omode"] == 0: return Op("vm", f"buffer_store_dwordx4 {vr(QN + 8*h + 4*j, 4)}, {vr(OWADDR)}, {srd(sO)}, s{sOT} offen offset:{(h&1)*128 + j*64}{NTO}", ("o",))
    return Op("vm", f"buffer_store_dwordx4 {vr(QN + 8*h + 4*j, 4)}, {vr(VOFF2)}, {srd(sO)}, s{sOT} offen offset:{j*2048 + (h&1)*128}{NTO}", ("o",))

def scale_pk(h, dst):
    o = []
    for g in range(2):
        b = 8 * h + 4 * g
        for i in range(4):
            o.append(f"v_lshlrev_b32 {vr(ET+2*i)}, 16, {vr(QN+b+i)}"); o.append(f"v_and_b32 {vr(ET+2*i+1)}, s{sMASK}, {vr(QN+b+i)}")
        for i in range(4): o.append(f"v_pk_mul_f32 {vr(ET+2*i, 2)}, {vr(ET+2*i, 2)}, s[{sC}:{sC+1}]")
        for i in range(4): o.append(f"v_cvt_pk_bf16_f32 {vr(dst+4*g+i)}, {vr(ET+2*i)}, {vr(ET+2*i+1)}")
    return o
def scale_plain(h):
    o = []
    for i in range(8):
        r = QN + 8 * h + i; t = ET + 2 * (i % 4)
        o += [f"v_lshlrev_b32 {vr(t)}, 16, {vr(r)}", f"v_and_b32 {vr(t+1)}, s{sMASK}, {vr(r)}",
              f"v_mul_f32 {vr(t)}, s{sC}, {vr(t)}", f"v_mul_f32 {vr(t+1)}, s{sC}, {vr(t+1)}", f"v_cvt_pk_bf16_f32 {vr(r)}, {vr(t)}, {vr(t+1)}"]
    return o
def qfix(qb, it):
    o = [f"; Q block {qb} of the next item -> current"]
    for h in (2 * qb, 2 * qb + 1):
        if h < OPT["hid"]:
            o += [f"v_mov_b64 {vr(QCUR+8*h+2*i, 2)}, {vr(QN+8*h+2*i, 2)}" for i in range(4)]
        else:
            o += scale_pk(h, QCUR + 8 * h)
    return o
def lsum(qb, check):
    o = []; l = vr(Lr(qb))
    if not RS:
        for sw in ("v_permlane32_swap_b32", "v_permlane16_swap_b32"):
            o += [f"v_mov_b32 {vr(RL+1)}, {l}", f"{sw} {l}, {vr(RL+1)}", f"v_add_f32 {l}, {l}, {vr(RL+1)}"]
    o.append(f"v_rcp_f32 {vr(RL)}, {l}")
    if check:
        if qb == 0: o.append(f"v_subrev_u32 {vr(CHK)}, s{sRNG}, {l}")
        else: o += [f"v_subrev_u32 {vr(RL+1)}, s{sRNG}, {l}", f"v_max_u32 {vr(CHK)}, {vr(CHK)}, {vr(RL+1)}"]
        if qb == NQB - 1: o.append(f"v_cmp_lt_u32 vcc, {hex(HI_BITS - LO_BITS)}, {vr(CHK)}")
    return o
def flag_update(): return ["s_cmp_lg_u64 vcc, 0", f"s_cselect_b32 s{sT2}, s{sBIT}, 0", f"s_or_b32 s{sFLAG}, s{sFLAG}, s{sT2}", f"s_lshl_b32 s{sBIT}, s{sBIT}, 1"]
def pack_grp(qb, e):
    o = []; Dd = QN + 16 * qb + 4 * e
    for i in range(8): o.append(f"v_accvgpr_read_b32 {vr(ET+i)}, {ar(AO + 32*qb + 8*e + i)}")
    for i in range(4): o.append(f"v_pk_mul_f32 {vr(ET+2*i, 2)}, {vr(ET+2*i, 2)}, {vr(RL, 2)} op_sel_hi:[1,0]")
    for i in range(4): o.append(f"v_cvt_pk_bf16_f32 {vr(Dd+i)}, {vr(ET+2*i)}, {vr(ET+2*i+1)}")
    return o
def pack(qb, check=True):
    o = [f"; normalise + pack O block {qb}"] + lsum(qb, check)
    for e in range(4): o += pack_grp(qb, e)
    if check and qb == NQB - 1: o += flag_update()
    return o

if OPT["chain"] == 2: ORDER = [("qk", j) for j in range(8)] + [("pv", j) for j in range(8)]
elif OPT["chain"] == 3: ORDER = [("qk", 0), ("qk", 1), ("pv", 0), ("pv", 1), ("qk", 2), ("qk", 3), ("pv", 2), ("pv", 3), ("qk", 4), ("qk", 5), ("pv", 4), ("pv", 5), ("qk", 6), ("qk", 7), ("pv", 6), ("pv", 7)]
elif OPT["chain"]: ORDER = [("qk", j) for j in range(4)] + [("pv", j) for j in range(4)] + [("qk", j) for j in range(4, 8)] + [("pv", j) for j in range(4, 8)]
else: ORDER = [x for j in range(8) for x in (("qk", j), ("pv", j))]
if RS: ORDER.append(("rs",))
POS = {x: i for i, x in enumerate(ORDER)}

class Gap:
    def __init__(s, m): s.m = m; s.mem = []; s.val = []; s.tail = []
    def used(s): return sum(map(cost, s.mem + s.val + s.tail))
    def free(s): return (2 if s.m else 0) - s.used()

class Sched:
    def __init__(s, n0, n1, last=False, first=False):
        s.n0, s.n1, s.last, s.first = n0, n1, last, first
        s.g = []
        for n in range(n0, n1):
            qk = qk_mfmas(n + 2) if not (last and n + 2 >= NS) else [None] * 8
            pv = pv_mfmas(n) if n >= 0 else [None] * 8
            for x in ORDER:
                s.g.append(Gap(qk[x[1]] if x[0] == "qk" else pv[x[1]] if x[0] == "pv" else (rs_mfma(n) if n >= 0 else None)))
            m = n + 1
            if m >= 0 and not (last and m >= NS):
                buf = m % 2; u, qb = divmod(m % NS, NQB); l = vr(Lr(qb))
                for i in range(8):
                    s.at(n, 2 * i).val.append(f"v_exp_f32 {S(buf, i)}, {S(buf, i)}")
                    if not RS:
                        s.at(n, 2 * i + 1).val.append(f"v_mov_b32 {l}, {S(buf, i)}" if (u == 0 and i == 0) else f"v_add_f32 {l}, {l}, {S(buf, i)}")
                for j in range(4):
                    gp = (7 if j < 2 else 15) if RS else 4 * j + 3
                    s.at(n, gp).val.append(f"v_cvt_pk_bf16_f32 {P(buf, j, 1)}, {S(buf, 2*j)}, {S(buf, 2*j+1)}")
    def idx(s, n, i): return (n - s.n0) * NG + i
    def has(s, n): return s.n0 <= n < s.n1
    def at(s, n, i): return s.g[s.idx(n, i)]
    def put(s, k, x):
        g = s.g[k]
        (g.mem if isinstance(x, Op) else g.val).append(x)
    def place(s, x, lo, hi):
        hi = min(hi, len(s.g) - 1); lo = min(lo, hi)
        want = min(cost(x), 2)
        for w in (want, 1):
            for k in range(lo, hi + 1):
                if s.g[k].free() >= w and not (isinstance(x, Op) and any(isinstance(y, Wt) or y.startswith("s_") for y in s.g[k].val)):
                    s.put(k, x); return k
        k = max(range(lo, hi + 1), key=lambda k: (s.g[k].free(), -k))
        if isinstance(x, Op) and any(isinstance(y, Wt) or y.startswith("s_") for y in s.g[k].val): s.g[k].tail.append(x)
        else: s.put(k, x)
        return k
    def chain(s, xs, lo, span=40):
        k = lo; prev = None
        for x in xs:
            if isinstance(x, tuple): k += x[0]; continue
            lo2 = k + 1 if (prev is not None and isinstance(x, Op) and not isinstance(prev, Op)) else k
            k = s.place(x, lo2, lo2 + span); prev = x
        return k
    def emit(s):
        o = []
        for k, g in enumerate(s.g):
            if k % NG == 0: o.append(f"; step {s.n0 + k // NG}")
            if g.m: o.append(g.m)
            o += g.mem + g.val + g.tail
        return o
    def stats(s):
        tot = sum(max(4 if g.m else 0, (2 if g.m else 0) + g.used()) for g in s.g)
        waste = sum(max(0, g.free()) for g in s.g)
        return tot, waste

def fstamp(i, vreg=0, sreg=70):
    return [f"s_add_u32 m0, s74, {i}", f"v_writelane_b32 v{vreg}, s{sreg}, m0"]

def build(n0, n1, last=False, first=False):
    s = Sched(n0, n1, last, first)
    steps = range(n0, n1)
    for n in steps:
        u, ph = divmod(n, NQB)
        g0 = s.at(n, NG - 1).tail
        if n >= 0 and ph == 1 and u % 2 == 0 and not (last and u + 1 >= NU) and not first:
            if OPT["fine"]: g0 += ["s_memtime s[70:71]"]
            g0 += [Wt("vm", ("kv", u + 2)), "s_barrier"]
            if OPT["fine"]: g0 += ["s_memtime s[72:73]"]
        if first and n == 5: g0 += [Wt("vm", ("kv", 2)), "s_barrier"]
        if first and n <= 2: g0 += startq(n + 3)
        if not last and 88 <= n < 94: g0 += qfix(n - 88, 1)
        if 90 <= n - 1 < 96 and not last: s.at(n, 3).tail.extend(pack(n - 91))
        if n == 88 and not last:
            s.at(n, 0).tail.extend([f"s_mov_b32 s{sO+2}, {QBYTES}", f"s_mov_b32 s{sOP}, s{sQOFF}", f"s_add_u32 s{sT}, s{sT}, 1"] + item_vars())
    for n in steps:
        u, ph = divmod(n, NQB)
        if n < 0 or (last and u + 1 >= NU): continue
        if ph == 3:
            for j in range(8):
                k = s.idx(n, POS[("qk", j)]); s.place(kread(u + 1, j), k, min(k + 6, s.idx(n, NG - 1)) if n == 87 else k + 6)
        if ph == 5:
            for db in range(8):
                k = s.idx(n, POS[("pv", db)])
                for hf in range(2): s.place(vread(u + 1, db, hf), k, k + 6)
    for n in steps:
        u, ph = divmod(n, NQB)
        if ph == 4 and not (last and u + 1 >= NU):
            for j0, j1 in ((0, 3), (4, 7)):
                k = s.idx(n, POS[("qk", j0)]) - 1
                w = Wt("lg", ("k", u + 1, j1))
                if k < 0: s.pre = getattr(s, "pre", []) + [w]
                else: s.place_back(w, k)
        if ph == 0 and n >= 0:
            for j0, j1 in ((0, 3), (4, 7)):
                k = s.idx(n, POS[("pv", j0)]) - 1
                s.place_back(Wt("lg", ("v", u, j1)), k)
    for n in steps:
        u, ph = divmod(n, NQB)
        if n < 0 or ph != 2 or last: continue
        rel = u + LA; xs = []
        if rel % NU == 0:
            xs += [f"s_mov_b32 s{sKV}, s{sKVNX}", "SCC", f"s_cmp_lt_u32 s{sT}, 3", f"s_cselect_b32 s{sK+2}, s{sK+2}, 0", f"s_cselect_b32 s{sV+2}, s{sV+2}, 0"]
            s.at(n, 0).tail.extend([x for x in xs if x != "SCC"]); xs = []
        s.m0_events.append((s.idx(n + 1, 0) if first else s.idx(n, 1), [setm0("k", rel), dma("k", 0, rel), dma("k", 1, rel)]))
        s.m0_events.append((s.idx(n + 2, 0), [setm0("v", rel), dma("v", 0, rel), dma("v", 1, rel), f"s_add_u32 s{sKV}, s{sKV}, 8192"]))
    ready = {}; optr = {}
    NQ = lambda h: OPT["q0"] + (h * OPT["qp"]) // 4
    NO = lambda h: OPT["o0"] + (h * OPT["op"]) // 4
    def where(e):
        if first: return (max(e, 3), 0) if e < 6 else (None, 0)
        if last: return (None, 0)
        return (e + NS, 1) if e < 6 else (e, 0)
    for h in sorted(range(12), key=lambda h: where(NO(h))[0] or 0):
        no, d = where(NO(h))
        if no is None or first: continue
        xs = [f"s_add_u32 s{sOT}, s{sOP}, {(h//2)*4096}"] if h % 2 == 0 else []
        if OPT["omode"] == 1: xs = [owrite(h, 0, d), owrite(h, 1, d), oread(h, 0, d), oread(h, 1, d)] + xs + [(8,), Wt("lg", ("or", d, h))]
        xs += [ostore(h, 0), ostore(h, 1)]
        lo = s.idx(no, 0)
        if d: lo = max(lo, s.idx(91 + h // 2, 4))
        k = s.chain(xs, max(lo, max(optr.values(), default=0) + 1))
        optr[h] = k
        assert d or k < s.idx(88, 0)
    for h in range(12):
        nr = min(max(NQ(h) + OPT["ql"], OPT["qr0"] + h), 86)
        if first or last: continue
        lo = s.idx(nr, 0)
        if not where(NO(h))[1]: lo = max(lo, optr[h] + 1)
        buf = (h % NBUF) * 2048
        ready[h] = s.chain([Wt("vm", ("q", 1, h)), qread(h, 0, buf, 1), qread(h, 1, buf, 1), (8,), Wt("lg", ("qr", 1, h))], max(lo, ready.get(h - 1, 0)))
        assert ready[h] < s.idx(88 + h // 2, NG - 1)
    for h in range(12):
        nq, d = where(NQ(h))
        if nq is None: continue
        buf = (h % NBUF) * 2048
        xs = [f"s_add_u32 s{sTMP}, s{sQNX}, {(h//2)*4096}"] if h % 2 == 0 else []
        dep = ready.get(h - NBUF + 12 * d, 0)
        assert d == 0 or h < NBUF
        assert not (d and nq <= 88)
        s.m0_events.append((max(s.idx(nq, 0), dep), xs + [qm0(sMS, buf, h, 0), qdma(h, 0, 1 + d), qm0(sMS, buf, h, 1), qdma(h, 1, 1 + d)]))
    if OPT["fine"]:
        for n in steps:
            u, ph = divmod(n, NQB)
            if n >= 0 and ph == 4 and u % 2 == 0 and not last and not first:
                s.m0_events.append((s.idx(n, 10), [f"s_add_u32 m0, s74, {(u % 16) // 2 - (8 if n == 88 else 0)}", "v_writelane_b32 v0, s70, m0", "s_sub_u32 s72, s72, s70", "s_add_u32 s76, s76, s72"]))
    k = 0
    for lo, xs in sorted(s.m0_events, key=lambda e: e[0]):
        k = s.chain(xs, max(lo, k + 1))
    k = 0
    for h in range(OPT["hid"]):
        if h not in ready: continue
        k = s.chain(scale_plain(h), max(k, ready[h]), span=400)
        assert k < s.idx(88, NG - 1), ("hidden scaling too late", h, k // NG + n0)
        if OPT["verbose"]: print("hidden h", h, "done at step", k // NG + n0)
    return s
def place_back(s, w, k):
    for b in range(k, max(k - 3, -1), -1):
        if s.g[b].free() >= 1: s.g[b].tail.append(w); return
    s.g[k].tail.append(w)
Sched.place_back = place_back
_init = Sched.__init__
def init2(s, *a, **k): _init(s, *a, **k); s.m0_events = []; s.pre = []
Sched.__init__ = init2

def item_vars():
    o = [f"s_mov_b32 s{sQOFF}, s{sQNX}", f"s_add_u32 s{sQNX}, s{sQNX}, {256*98304}", f"s_add_u32 s{sKVNX}, s{sKVNX}, {128*131072}",
         f"s_cmp_lt_u32 s{sT}, 3", f"s_cselect_b32 s{sQ+2}, s{sQ+2}, 0"]
    if OPT["fine"]: o.append(f"s_lshl_b32 s74, s{sT}, 3")
    return o
def stamp(i):
    if not OPT["stamps"]: return []
    return [f"s_memtime s[{60+4*i}:{61+4*i}]", f"s_memrealtime s[{62+4*i}:{63+4*i}]"]
def pstamp(i):
    if not OPT["fine"]: return []
    return ["s_memtime s[70:71]", "s_waitcnt lgkmcnt(0)", f"v_writelane_b32 v0, s70, {48+i}"]
def build_srds():
    o = []
    for r, p, n in ((sQ, 40, QBYTES), (sK, 42, KBYTES), (sV, 44, KBYTES), (sO, 46, QBYTES)):
        o += [f"s_mov_b32 s{r}, s{p}", f"s_mov_b32 s{r+1}, s{p+1}", f"s_mov_b32 s{r+2}, {n}", f"s_mov_b32 s{r+3}, 0x20000"]
    return o

pro = []; A = pro.append
A("s_cmp_ge_u32 s2, 256"); A("s_cbranch_scc1 Lend")
A("s_load_dwordx4 s[40:43], s[0:1], 0"); A("s_load_dwordx4 s[44:47], s[0:1], 16")
if OPT["stamps"]: A("s_load_dwordx2 s[48:49], s[0:1], 40")
pro += stamp(0)
if OPT["spin"] or OPT["dbg"]: A("s_memrealtime s[80:81]"); A("s_memtime s[84:85]"); A("s_load_dwordx2 s[88:89], s[0:1], 32")
W_, I_, G_, T0, T1 = 56, 57, 58, 59, 60
A(f"v_lshrrev_b32 v{W_}, 6, v0"); A("v_and_b32 v0, 63, v0")
A(f"v_readfirstlane_b32 s{sW}, v{W_}")
A(f"v_lshrrev_b32 v{G_}, 4, v0"); A(f"v_and_b32 v{T0}, 7, v0"); A(f"v_xor_b32 v{T0}, v{T0}, v{G_}"); A(f"v_lshlrev_b32 v{T0}, 4, v{T0}")
A(f"v_lshrrev_b32 v{T1}, 3, v0"); A(f"v_mul_u32_u24 v{ORADDR}, 144, v{T1}"); A(f"v_add_u32 v{ORADDR}, v{ORADDR}, v{T0}")
A(f"v_mul_u32_u24 v{VOFF2}, {16*NQB}, v{W_}"); A(f"v_add_u32 v{VOFF2}, v{VOFF2}, v{T1}"); A(f"v_lshl_add_u32 v{VOFF2}, v{VOFF2}, 8, v{T0}")
A(f"s_lshr_b32 s{sT2}, s2, 4"); A(f"s_lshl_b32 s{sT2}, s{sT2}, 3"); A(f"s_and_b32 s{sTMP}, s2, 7"); A(f"s_add_u32 s{sT2}, s{sT2}, s{sTMP}")
A(f"s_lshl_b32 s{sKV0}, s{sT2}, 17")
A(f"s_lshl_b32 s{sT2}, s{sT2}, 1"); A(f"s_lshr_b32 s{sTMP}, s2, 3"); A(f"s_and_b32 s{sTMP}, s{sTMP}, 1"); A(f"s_add_u32 s{sT2}, s{sT2}, s{sTMP}")
A(f"s_mul_i32 s{sQ0}, s{sT2}, 98304")
A(f"s_mul_i32 s{sU}, s{sW}, {SLOT}"); A(f"s_add_u32 s{sU}, s{sU}, {4*SLOT}")
A(f"s_mov_b32 s{sQNX}, s{sQ0}")
if OPT["cpf"]:
    A("s_getpc_b64 s[52:53]"); A("Lpc:")
    A(f"s_lshr_b32 s{sT2}, s2, 3"); A(f"s_lshl_b32 s{sT2}, s{sT2}, 2"); A(f"s_add_u32 s{sT2}, s{sT2}, s{sW}"); A(f"s_and_b32 s{sT2}, s{sT2}, 63")
    A(f"s_lshl_b32 s{sT2}, s{sT2}, 10"); A(f"s_min_u32 s{sT2}, s{sT2}, Lslow - Lpc - 1024")
    A(f"v_lshlrev_b32 v{T0}, 4, v0"); A(f"v_add_u32 v{T0}, s{sT2}, v{T0}")
    A(Op("vm", f"global_load_dwordx4 {P(0)}, v{T0}, s[52:53]", ("x",)))
A(f"v_and_b32 v{I_}, 15, v0")
A(f"v_lshrrev_b32 v{T0}, 2, v{I_}"); A(f"v_mul_u32_u24 v{KADDR}, {REG}, v{T0}"); A(f"v_add_u32 v{VADDR}, {VRING}, v{KADDR}")
A(f"v_and_b32 v{T0}, 3, v{I_}"); A(f"v_lshl_add_u32 v{KADDR}, v{T0}, 8, v{KADDR}")
A(f"v_xor_b32 v{T1}, v{G_}, v{T0}"); A(f"v_lshl_add_u32 v{KADDR}, v{T1}, 4, v{KADDR}")
A(f"v_lshl_add_u32 v{VADDR}, v{G_}, 8, v{VADDR}"); A(f"v_lshl_add_u32 v{VADDR}, v{T0}, 4, v{VADDR}")
if RS:
    A(f"v_mov_b32 v{T1}, 0x3f803f80")
    for r in range(3):
        A(f"v_cmp_eq_u32 vcc, {r}, v{T0}"); A(f"v_cndmask_b32 v{SEL+4*r}, 0, v{T1}, vcc")
        for i in range(1, 4): A(f"v_mov_b32 v{SEL+4*r+i}, v{SEL+4*r}")
A(f"v_xor_b32 v{T0}, v{I_}, v{G_}"); A(f"v_lshlrev_b32 v{T0}, 4, v{T0}"); A(f"v_lshl_add_u32 v{VOFFK}, v{G_}, 8, v{T0}"); A(f"v_lshl_add_u32 v{VOFFK}, v{W_}, 11, v{VOFFK}")
A(f"v_lshlrev_b32 v{T0}, 4, v{I_}"); A(f"v_lshl_add_u32 v{VOFFV}, v{G_}, 11, v{T0}"); A(f"v_lshl_add_u32 v{VOFFV}, v{W_}, 8, v{VOFFV}")
A(f"v_bfe_u32 v{T0}, v{I_}, 1, 2"); A(f"v_xor_b32 v{T0}, v{T0}, v{G_}"); A(f"v_lshlrev_b32 v{T0}, 4, v{T0}"); A(f"v_lshl_add_u32 v{QRADDR}, v{I_}, 7, v{T0}")
if OPT["omode"] == 1: A(f"v_mul_u32_u24 v{OWADDR}, 144, v{I_}"); A(f"v_lshl_add_u32 v{OWADDR}, v{G_}, 4, v{OWADDR}")
else:
    A(f"v_mul_u32_u24 v{OWADDR}, {16*NQB}, v{W_}"); A(f"v_add_u32 v{OWADDR}, v{OWADDR}, v{I_}"); A(f"v_lshlrev_b32 v{OWADDR}, 8, v{OWADDR}"); A(f"v_lshl_add_u32 v{OWADDR}, v{G_}, 4, v{OWADDR}")
A(f"s_mul_i32 s{sMS}, s{sW}, {SCRW}"); A(f"s_add_u32 s{sMS}, s{sMS}, {SCR}"); A(f"s_add_u32 s{sT2}, s{sMS}, 4096")
if OPT["omode"] == 1: A(f"v_add_u32 v{OWADDR}, s{sT2}, v{OWADDR}"); A(f"v_add_u32 v{ORADDR}, s{sT2}, v{ORADDR}")
A(f"v_add_u32 v{RL}, s{sU}, v{QRADDR}"); A(f"v_add_u32 v{RL+1}, {VRING}, v{RL}"); A(f"v_add_u32 v{QRADDR}, s{sMS}, v{QRADDR}")
A(f"s_mul_i32 s{sMK}, s{sW}, {REG}"); A(f"s_add_u32 s{sMV}, s{sMK}, {VRING}")
A(f"s_mov_b32 s{sT}, 0"); A(f"s_mov_b32 s{sFLAG}, 0"); A(f"s_mov_b32 s{sBIT}, 1")
A(f"s_mov_b32 s{sC}, {hex(CBITS)}"); A(f"s_mov_b32 s{sC+1}, {hex(CBITS)}"); A(f"s_mov_b32 s{sMASK}, 0xffff0000"); A(f"s_mov_b32 s{sRNG}, {hex(LO_BITS)}")
A(f"s_mov_b32 s{sKV}, s{sKV0}"); A(f"s_mov_b32 s{sKVNX}, s{sKV0}")
A("s_waitcnt lgkmcnt(0)")
pro += build_srds()
def pbuf(h): return (h % 8 // 4) * VRING + (h % 4) * 2048
def pq(h):
    xs = [f"s_add_u32 s{sTMP}, s{sQ0}, {(h//2)*4096}"] if h % 2 == 0 else []
    return xs + [qm0(sU, pbuf(h), h, 0), "s_nop 0", qdma(h, 0, 0), qm0(sU, pbuf(h), h, 1), "s_nop 0", qdma(h, 1, 0)]
A(f"s_mov_b32 s{sO+2}, 0"); A(f"s_mov_b32 s{sOP}, 0")
AH = OPT["ah"]
def dma_half(kv, rel):
    return [setm0(kv, rel), "s_nop 0", dma(kv, 0, rel), dma(kv, 1, rel)] + ([f"s_add_u32 s{sKV}, s{sKV}, 8192"] if kv == "v" else [])
later = [pq(0), pq(1), dma_half("k", 0), dma_half("v", 0)] + [pq(h) for h in range(2, 10)] + [dma_half("k", 1), dma_half("v", 1), pq(10), pq(11)]
later += [dma_half(kv, r) for r in range(2, LA) for kv in "kv"]
for i in range(AH + 2): pro += later.pop(0)
def startq(qb):
    o = [f"; start-up: Q block {qb}"]
    for h in (2 * qb, 2 * qb + 1):
        o.append(Wt("vm", ("q", 0, h)))
        o += [qread(h, x, (h % 4) * 2048, 0, addr=RL + (h % 8 // 4)) for x in range(2)]
    o.append(Wt("lg", ("qr", 0, 2 * qb + 1)))
    if qb == NQB - 1: o += [Wt("vm", ("kv", 1)), "s_barrier"]
    for h in (2 * qb, 2 * qb + 1):
        if later: o += later.pop(0)
        o += scale_pk(h, QCUR + 8 * h)
    while qb == NQB - 1 and later: o += later.pop(0)
    return o + pstamp(1 + qb)
if OPT["fine"]: A("s_mov_b32 s76, 0")
pro += item_vars()
pro += pstamp(0)
pro += startq(0)
A(Wt("vm", ("kv", 0))); A("s_barrier")
for j in range(8): A(kread(0, j))
for db in range(8): A(vread(0, db, 0)); A(vread(0, db, 1))
s0 = build(-2, 6, first=True)
pro += s0.pre + s0.emit() + (["s_memtime s[70:71]", "s_waitcnt lgkmcnt(0)", "v_writelane_b32 v0, s70, 0"] if OPT["fine"] else [])

sb = build(6, NS + 6)
em = sb.emit()
cut = em.index("; step 88")
bodyA = [".p2align 6", "Litem:"] + em[:cut] + [f"s_cmp_eq_u32 s{sT}, 3", "s_cbranch_scc1 Llast"]
bodyB = em[cut:] + ["s_branch Litem"]
if OPT["verbose"]: print("loop slots, waste:", sb.stats(), " pipe:", 4 * NG * NS)

st = build(88, NS, last=True)
def pack_store(qb):
    o = [f"; block {qb}: normalise, pack, store"] + lsum(qb, True) + [f"s_add_u32 s{sOT}, s{sQOFF}, {qb*4096}"]
    for f in range(2):
        h = 2 * qb + f
        o += pack_grp(qb, 2 * f) + pack_grp(qb, 2 * f + 1)
        if OPT["omode"] == 0: o += [ostore(h, 0), ostore(h, 1)]; continue
        if f == 1: o += [Wt("lg", ("or", 1, h - 1)), ostore(h - 1, 0), ostore(h - 1, 1)]
        o += [owrite(h, 0, 1), owrite(h, 1, 1), oread(h, 0, 1), oread(h, 1, 1)]
    return o
def store2(qb): return [] if OPT["omode"] == 0 else [Wt("lg", ("or", 1, 2 * qb + 1)), ostore(2 * qb + 1, 0), ostore(2 * qb + 1, 1)]
for qb in range(5):
    st.at(91 + qb, 3).tail.extend(pack_store(qb))
    st.at(91 + qb, 11).tail.extend(store2(qb))
last = ["Llast:", "s_waitcnt lgkmcnt(0)"] + st.emit() + pstamp(7) + pack_store(5) + store2(5) + flag_update()

def resolve(seqs):
    hist = {"vm": [], "lg": []}
    def absk(tag, it):
        if tag[0] == "kv": return ("kv", tag[1] + 16 * it)
        if tag[0] in ("k", "v"): return (tag[0], tag[1] + 16 * it, tag[2])
        if tag[0] in ("q", "qr", "ow", "or"): return (tag[0], tag[1] + it, tag[2])
        return tag
    for seq, it in seqs:
        for x in seq:
            if isinstance(x, Op): hist[x.cls].append(absk(x.tag, it))
            elif isinstance(x, Wt):
                c = absk(x.cond, it); h = hist[x.cls]; lasti = -1
                for i, t in enumerate(h):
                    if t[0] != c[0]: continue
                    if (c[0] == "kv" and t[1] <= c[1]) or (c[0] in ("k", "v") and t[1] == c[1] and t[2] <= c[2]) or t == c: lasti = i
                assert lasti >= 0, c
                if c[0] in ("k", "v"): assert sum(1 for t in h if t[0] == c[0] and t[1] == c[1] and t[2] <= c[2]) == (c[2] + 1) * (1 if c[0] == "k" else 2), c
                if c[0] in ("q", "qr", "or"): assert sum(1 for t in h if t == c) == 2, c
                if c[0] == "kv": assert it == 2 or sum(1 for t in h if t[0] == "kv" and t[1] <= c[1]) == 4 * (c[1] + 1), c
                x.n = min(x.n, len(h) - 1 - lasti)
path = [(pro, 0), (bodyA, 0), (bodyB, 0), (bodyA, 1), (bodyB, 1), (bodyA, 2), (last, 2)]
resolve(path)

slow = []; A = slow.append
VQ = OWADDR; ML = 12; MM = 20; MT = 26
A("Lslow:")
A(f"s_cmp_eq_u32 s{sFLAG}, 0"); A("s_cbranch_scc1 Lfin")
A("s_waitcnt vmcnt(0) lgkmcnt(0)"); A("s_barrier")
slow += build_srds()
A(f"s_mul_i32 s{sMK}, s{sW}, {2*SLOT}"); A(f"s_add_u32 s{sMV}, s{sMK}, {VRING}")
A(f"v_add_u32 v{KADDR}, s{sMK}, v{KADDR}"); A(f"v_add_u32 v{VADDR}, s{sMK}, v{VADDR}")
A(f"s_lshl_b32 s{sT2}, s{sW}, 11"); A(f"v_subrev_u32 v{VOFFK}, s{sT2}, v{VOFFK}")
A(f"s_lshl_b32 s{sT2}, s{sW}, 8"); A(f"v_subrev_u32 v{VOFFV}, s{sT2}, v{VOFFV}")
A(f"v_mbcnt_lo_u32_b32 v{MT}, -1, 0"); A(f"v_mbcnt_hi_u32_b32 v{MT}, -1, v{MT}")
A(f"v_and_b32 v{VQ}, 15, v{MT}"); A(f"s_mul_i32 s{sT2}, s{sW}, {16*NQB}"); A(f"v_add_u32 v{VQ}, s{sT2}, v{VQ}"); A(f"v_lshlrev_b32 v{VQ}, 8, v{VQ}")
A(f"v_lshrrev_b32 v{MT}, 4, v{MT}"); A(f"v_lshl_add_u32 v{VQ}, v{MT}, 4, v{VQ}")
A(f"s_mov_b32 s{sQOFF}, s{sQ0}"); A(f"s_mov_b32 s{sKVNX}, s{sKV0}")
A("Lslow_item:")
A(f"s_and_b32 s{sT2}, s{sFLAG}, 1"); A("s_cbranch_scc0 Lslow_next")
for qb in range(NQB):
    A(f"s_add_u32 s{sTMP}, s{sQOFF}, {qb*4096}")
    for ks in range(4): A(f"buffer_load_dwordx4 {Q(qb, ks)}, {vr(VQ)}, {srd(sQ)}, s{sTMP} offen offset:{ks*64}")
def slow_load(withv):
    o = []
    for w in range(4):
        o += [f"s_add_u32 m0, s{sMK}, {w*REG}", f"s_add_u32 s{sKV}, s{sU}, {w*2048}", dma("k", 0, 0).text, dma("k", 1, 0).text]
        if withv: o += [f"s_add_u32 m0, s{sMV}, {w*REG}", f"s_add_u32 s{sKV}, s{sU}, {w*256}", dma("v", 0, 0).text, dma("v", 1, 0).text]
    o.append("s_waitcnt vmcnt(0)")
    for j in range(8): o.append(kread(0, j).text)
    o.append("s_waitcnt lgkmcnt(0)")
    if withv:
        for db in range(8): o += [vread(0, db, 0).text, vread(0, db, 1).text]
        o.append("s_waitcnt lgkmcnt(0)")
    return o
def lreduce(ins):
    o = []
    for sw in ("v_permlane32_swap_b32", "v_permlane16_swap_b32"):
        for q in range(NQB): o.append(f"v_mov_b32 {vr(MT + q)}, {vr(ML + q)}")
        for q in range(NQB): o.append(f"{sw} {vr(ML + q)}, {vr(MT + q)}")
        for q in range(NQB): o.append(f"{ins} {vr(ML + q)}, {vr(ML + q)}, {vr(MT + q)}")
    return o
for q in range(NQB): A(f"v_mov_b32 {vr(ML+q)}, 0xff800000")
A(f"s_mov_b32 s{sU}, s{sKVNX}"); A(f"s_mov_b32 s{sT}, 0")
A("Lslow_p1:")
slow += slow_load(False)
for qb in range(NQB):
    slow += qk_mfmas(qb)
    for i in range(4): A(f"v_max3_f32 {vr(ML+qb)}, {vr(ML+qb)}, {S(qb%2, 2*i)}, {S(qb%2, 2*i+1)}")
A(f"s_add_u32 s{sU}, s{sU}, 8192"); A(f"s_add_u32 s{sT}, s{sT}, 1"); A(f"s_cmp_lt_u32 s{sT}, {NU}"); A("s_cbranch_scc1 Lslow_p1")
slow += lreduce("v_max_f32")
for q in range(NQB):
    A(f"v_mul_f32 {vr(MM+q)}, s{sC}, {vr(ML+q)}"); A(f"v_mov_b32 {vr(ML+q)}, 0")
for i in range(32 * NQB): A(f"v_accvgpr_write_b32 {ar(AO+i)}, 0")
A(f"s_mov_b32 s{sU}, s{sKVNX}"); A(f"s_mov_b32 s{sT}, 0")
A("Lslow_p2:")
slow += slow_load(True)
for qb in range(NQB):
    b = qb % 2
    slow += qk_mfmas(qb)
    for i in range(8): A(f"v_fma_f32 {S(b,i)}, {S(b,i)}, s{sC}, -{vr(MM+qb)}")
    for i in range(8): A(f"v_exp_f32 {S(b,i)}, {S(b,i)}")
    for i in range(8): A(f"v_add_f32 {vr(ML+qb)}, {vr(ML+qb)}, {S(b,i)}")
    for i in range(4): A(f"v_cvt_pk_bf16_f32 {P(b,i,1)}, {S(b,2*i)}, {S(b,2*i+1)}")
    slow += pv_mfmas(NQB + qb)
A(f"s_add_u32 s{sU}, s{sU}, 8192"); A(f"s_add_u32 s{sT}, s{sT}, 1"); A(f"s_cmp_lt_u32 s{sT}, {NU}"); A("s_cbranch_scc1 Lslow_p2")
slow += lreduce("v_add_f32")
for qb in range(NQB):
    A(f"v_rcp_f32 {vr(RL)}, {vr(ML+qb)}"); A(f"s_add_u32 s{sOT}, s{sQOFF}, {qb*4096}")
    for e in range(4):
        slow += pack_grp(qb, e)
        A(f"buffer_store_dwordx4 {vr(QN+16*qb+4*e, 4)}, {vr(VQ)}, {srd(sO)}, s{sOT} offen offset:{e*64}")
A("Lslow_next:")
A(f"s_add_u32 s{sQOFF}, s{sQOFF}, {256*98304}"); A(f"s_add_u32 s{sKVNX}, s{sKVNX}, {128*131072}")
A(f"s_lshr_b32 s{sFLAG}, s{sFLAG}, 1"); A("s_cbranch_scc1 Lslow_item")
A("Lfin:")

fin = []
if OPT["dbg"]:
    fin += ["s_waitcnt vmcnt(0)", "s_memrealtime s[82:83]", "s_memtime s[86:87]", "s_waitcnt lgkmcnt(0)", "s_sub_u32 s82, s82, s80", "s_sub_u32 s86, s86, s84",
            "s_cmp_ge_u32 s2, 8", "s_cbranch_scc1 Lnodbg", "s_lshl_b32 s3, s2, 3", "v_mov_b32 v56, s3", "v_mov_b32 v58, s82", "v_mov_b32 v59, s86",
            "global_store_dwordx2 v56, v[58:59], s[88:89]", "Lnodbg:"]
if OPT["spin"]:
    fin += ["Lspin:", "s_memrealtime s[82:83]", "s_waitcnt lgkmcnt(0)", "s_sub_u32 s82, s82, s80", f"s_cmp_lt_u32 s82, {OPT['spin']}", "s_cbranch_scc1 Lspin"]
if OPT["stamps"]:
    fin += ["s_waitcnt vmcnt(0)"] + stamp(1) + ["s_waitcnt lgkmcnt(0)", f"s_cmp_lg_u32 s{sW}, 0", "s_cbranch_scc1 Lend", "s_lshl_b32 s3, s2, 5", "v_mov_b32 v56, s3"]
    for i, r in enumerate([60, 62, 64, 66]):
        fin += [f"v_mov_b32 v58, s{r}", f"v_mov_b32 v59, s{r+1}", f"global_store_dwordx2 v56, v[58:59], s[48:49] offset:{8*i}"]
    if OPT["fine"]:
        fin += ["v_mbcnt_lo_u32_b32 v56, -1, 0", "v_mbcnt_hi_u32_b32 v56, -1, v56", "v_lshlrev_b32 v56, 2, v56", "s_lshl_b32 s3, s2, 9", "s_add_u32 s3, s3, 65536",
                "v_add_u32 v56, s3, v56", "v_writelane_b32 v0, s76, 56", "global_store_dword v56, v0, s[48:49]"]
fin.append("Lend:")

def txt(x):
    if isinstance(x, Op): return x.text
    if isinstance(x, Wt): return f"s_waitcnt {'vmcnt' if x.cls == 'vm' else 'lgkmcnt'}({x.n})"
    return x
T = lambda seq: [txt(x) for x in seq]
haz.scoreboard(sum([T(s) for s, _ in path], []))
def killf(seq):
    k = OPT["kill"]; o = []
    for x in seq:
        t = x.tag[0] if isinstance(x, Op) else x.cond[0] if isinstance(x, Wt) else None
        if (k & 1) and t in ("ow", "or"): continue
        if (k & 2) and t == "o": continue
        if (k & 4) and t in ("q", "qr"): continue
        if (k & 8) and t == "kv": continue
        if (k & 16) and x == "s_barrier": continue
        if (k & 32) and t in ("k", "v") and isinstance(x, Wt): continue
        if (k & 64) and t in ("k", "v"): continue
        if (k & 128) and isinstance(x, str) and x.startswith("s_") and "m0" in x and "s74" not in x: continue
        o.append(x)
    return o
pro_t, bA, bB, la_t = T(pro), T(killf(bodyA)), T(killf(bodyB)), T(last)
lines = [f"; @launch grid=(256,1,1) block=(256,1,1) lds={LDS}",
         '.amdgcn_target "amdgcn-amd-amdhsa--gfx950"', ".text", f".globl {KN}", ".p2align 8", f".type {KN},@function", f"{KN}:"]
code = haz.fix(pro_t + bA + bB, verbose=OPT["verbose"])
n1 = len(haz.fix(bB[-40:] + bA[:40])); assert n1 == len(haz.fix(bB[-40:])) + len(haz.fix(bA[:40])), "back edge hazard"
n2 = len(haz.fix(bA[-40:] + la_t[:40])); assert n2 == len(haz.fix(bA[-40:])) + len(haz.fix(la_t[:40])), "exit edge hazard"
code += haz.fix(la_t + slow + fin, verbose=OPT["verbose"])
open(out_path, "w").write("\n".join(lines + code) + "\n" + footer(512, 256))
```
